```python
import torch

def _softmax(x, axis=-1):
    return torch.softmax(x, dim=axis)
def _gelu(x):
    return torch.nn.functional.gelu(x, approximate="tanh")
def _silu(x):
    return torch.nn.functional.silu(x)
def _sigmoid(x):
    return torch.sigmoid(x)
def _layernorm(x, axis=-1, eps=1e-5):
    m = x.mean(dim=axis, keepdim=True)
    v = x.var(dim=axis, keepdim=True, unbiased=False)
    return (x - m) / torch.sqrt(v + eps)
def _scatter_add(tgt, idx, src, axis=0):
    return tgt.clone().index_add_(axis, idx, src)
def _segment_sum(src, seg, n):
    out = torch.zeros((n,) + src.shape[1:], dtype=src.dtype)
    return out.index_add_(0, seg, src)
def _pad(x, pw):
    flat = tuple(v for pair in reversed(pw) for v in pair)
    return torch.nn.functional.pad(x, flat)

kernel_name = 'parallel_sum__gqa_block_cached__dense_activation_squared_relu__decode'

def setup_inputs():

    _w = (lambda a: (lambda t: t.to(torch.bfloat16) if t.is_floating_point() else t)(torch.as_tensor(a)))
    def _A_setup():
        B, Sq, D = 8, 1, 1024
        Hq, Hkv, Sk, Dh = 32, 4, 4096, 128
        assert Hq % Hkv == 0, (Hq, Hkv)
        return {
            "x": _w((lambda *s: torch.randn(*s, dtype=torch.bfloat16) * 0.05)(B, Sq, D)),
            "k_cache": _w((lambda *s: torch.randn(*s, dtype=torch.bfloat16) * 1.6)(B, Hkv, Sk, Dh)),
            "v_cache": _w((lambda *s: torch.randn(*s, dtype=torch.bfloat16) * 3.2)(B, Hkv, Sk, Dh)),
            "wq": _w((lambda *s: torch.randn(*s, dtype=torch.bfloat16) * 1.6)(D, Hq * Dh) * (D ** -0.5)),
            "wo": _w((lambda *s: torch.randn(*s, dtype=torch.bfloat16) * 3.2)(Hq * Dh, D) * ((Hq * Dh) ** -0.5)),
        }
    _A_in = _A_setup()

    def _B_setup():
        B, S, D, F = 8, 1, 1024, 3584
        return {
            "x": _w((lambda *s: torch.randn(*s, dtype=torch.bfloat16) * 0.05)(B, S, D)),
            "w1": _w((lambda *s: torch.randn(*s, dtype=torch.bfloat16) * 0.05)(D, F)),
            "b1": _w((lambda *s: torch.randn(*s, dtype=torch.bfloat16) * 0.4)(F)),
            "w2": _w((lambda *s: torch.randn(*s, dtype=torch.bfloat16) * 0.05)(F, D)),
            "b2": _w((lambda *s: torch.randn(*s, dtype=torch.bfloat16) * 3.2)(D)),
        }
    _B_in = _B_setup()

    return {
        "A_x": _A_in["x"],
        "A_k_cache": _A_in["k_cache"],
        "A_v_cache": _A_in["v_cache"],
        "A_wq": _A_in["wq"],
        "A_wo": _A_in["wo"],
        "B_x": _B_in["x"],
        "B_w1": _B_in["w1"],
        "B_b1": _B_in["b1"],
        "B_w2": _B_in["w2"],
        "B_b2": _B_in["b2"],
    }

def reference(A_x, A_k_cache, A_v_cache, A_wq, A_wo, B_x, B_w1, B_b1, B_w2, B_b2):
    def _A_ref(x, k_cache, v_cache, wq, wo):
        B, Sq, D = x.shape
        Hq, Dh = 32, 128
        Hkv = k_cache.shape[1]
        rep = Hq // Hkv
        q = (lambda x, *d: x.permute(*d))((x @ wq).reshape(B, Sq, Hq, Dh), 0, 2, 1, 3)
        k = (lambda x, n, axis: torch.repeat_interleave(x, n, dim=axis))(k_cache, rep, axis=1)
        v = (lambda x, n, axis: torch.repeat_interleave(x, n, dim=axis))(v_cache, rep, axis=1)
        scores = torch.einsum("bhqd,bhkd->bhqk", q, k) * (Dh ** -0.5)
        p = _softmax(scores, axis=-1)
        o = torch.einsum("bhqk,bhkd->bhqd", p, v)
        return (lambda x, *d: x.permute(*d))(o, 0, 2, 1, 3).reshape(B, Sq, Hq * Dh) @ wo

    def _B_ref(x, w1, b1, w2, b2):
        h = torch.einsum("bsd,df->bsf", x, w1) + b1
        zero = torch.zeros_like(h)
        r = torch.where(h > zero, h, zero)
        h = r * r
        out = torch.einsum("bsf,fd->bsd", h, w2) + b2
        return out

    x = A_x
    xn = _layernorm(x, axis=-1)
    return x + _A_ref(xn, A_k_cache, A_v_cache, A_wq, A_wo) + _B_ref(xn, B_w1, B_b1, B_w2, B_b2)
```

```python
import re

class Reg:
    def __init__(self, kind, base, n):
        self.kind, self.base, self.n = kind, base, n
    def __getitem__(self, i):
        if isinstance(i, slice):
            a = i.start or 0
            b = i.stop if i.stop is not None else self.n
            assert 0 <= a < b <= self.n, (a, b, self.n)
            return Reg(self.kind, self.base + a, b - a)
        assert 0 <= i < self.n, (i, self.n)
        return Reg(self.kind, self.base + i, 1)
    def __str__(self):
        if self.n == 1:
            return f"{self.kind}{self.base}"
        return f"{self.kind}[{self.base}:{self.base + self.n - 1}]"
    __repr__ = __str__
    def __format__(self, spec):
        return str(self)

class Alloc:
    def __init__(self, kind, start, limit):
        self.kind = kind
        self.free_ = set(range(start, limit))
        self.high = start
    def __call__(self, n=1, align=None):
        if align is None:
            align = 1 if n == 1 else (2 if n == 2 else 4)
        for b in sorted(self.free_):
            if b % align == 0 and all((b + i) in self.free_ for i in range(n)):
                for i in range(n):
                    self.free_.discard(b + i)
                self.high = max(self.high, b + n)
                return Reg(self.kind, b, n)
        raise AssertionError(f"out of {self.kind} registers")
    def give(self, lo, hi=None):
        if isinstance(lo, Reg):
            lo, hi = lo.base, lo.base + lo.n
        self.free_ |= set(range(lo, hi))
    def mark(self):
        return set(self.free_)
    def release(self, m):
        self.free_ |= m

class Asm:
    def __init__(self):
        self.lines = []
        self.vm = []
    def __call__(self, s):
        for ln in s.split("\n"):
            ln = ln.strip()
            if ln:
                self.lines.append(ln)
    def label(self, name):
        self.lines.append(name + ":")
    def comment(self, s):
        self.lines.append("; " + s)
    def vmem(self, s, tag=None):
        self(s)
        self.vm.append(tag)
    def wait_vm(self, tag, extra=""):
        idx = max(i for i, t in enumerate(self.vm) if t == tag)
        n = len(self.vm) - 1 - idx
        assert n <= 63
        self(f"s_waitcnt vmcnt({n}) {extra}".strip())
    def pace(self, depth):
        if len(self.vm) >= depth:
            self(f"s_waitcnt vmcnt({depth-1})")

_REG = re.compile(r"\b([vsa])(\d+)\b|\b([vsa])\[(\d+):(\d+)\]|\b(vcc|exec|m0|vcc_lo|vcc_hi|exec_lo|exec_hi)\b")
def regs_of(tok):
    out = set()
    for m in _REG.finditer(tok):
        if m.group(1):
            out.add((m.group(1), int(m.group(2))))
        elif m.group(3):
            for i in range(int(m.group(4)), int(m.group(5)) + 1):
                out.add((m.group(3), i))
        else:
            g = m.group(6)
            out.add(("x", g.split("_")[0]))
    return out

TRANS = ("v_exp_", "v_log_", "v_rcp_", "v_rsq_", "v_sqrt_", "v_sin_", "v_cos_")
class Ins:
    def __init__(self, text):
        self.text = text
        body = text.split(";")[0].strip()
        parts = body.split(None, 1)
        self.mn = parts[0]
        rest = parts[1] if len(parts) > 1 else ""
        ops = [o.strip() for o in rest.split(",")] if rest else []
        self.ops = ops
        mn = self.mn
        self.mfma = mn.startswith("v_mfma")
        self.valu = mn.startswith("v_") and not self.mfma
        self.trans = mn.startswith(TRANS)
        self.ds = mn.startswith("ds_")
        self.vmem = mn.startswith(("buffer_", "global_"))
        self.salu = mn.startswith("s_")
        self.dpp = "_dpp" in mn or "row_" in rest or "quad_perm" in rest
        self.permlane = mn.startswith("v_permlane")
        self.readlane = mn.startswith(("v_readlane", "v_readfirstlane"))
        self.ldsdma = self.vmem and (re.search(r"\blds\b", rest) is not None or "load_lds" in mn)
        self.states = 1
        if mn == "s_nop":
            self.states = int(ops[0], 0) + 1
        R = [regs_of(o) for o in ops]
        allr = set().union(*R) if R else set()
        self.w = set(); self.r = set()
        self.A = self.B = self.C = set()
        self.passes = 0
        self.widestore = set()
        if self.mfma:
            self.w = R[0]; self.A, self.B, self.C = R[1], R[2], R[3]
            self.r = R[1] | R[2] | R[3]
            self.passes = 8 if "32x32" in mn else 4
        elif self.valu:
            if mn == "v_nop":
                pass
            else:
                self.w = set(R[0])
                self.r = set().union(*R[1:]) if len(R) > 1 else set()
                if mn.startswith(("v_add_co", "v_sub_co", "v_addc_co", "v_subb_co", "v_subrev_co", "v_mad_u64", "v_div_scale")):
                    self.w |= R[1]
                    self.r = set().union(*R[2:])
                if self.permlane:
                    self.w = R[0] | R[1]; self.r = R[0] | R[1]
                if mn.startswith(("v_fmac", "v_dot2c", "v_pk_fmac", "v_writelane")) or self.dpp:
                    self.r |= R[0]
                if mn.startswith("v_cmpx"):
                    raise Exception("no v_cmpx please")
        elif self.ds:
            if mn.startswith(("ds_read", "ds_bpermute", "ds_permute", "ds_swizzle")) or "_rtn" in mn:
                self.w = R[0]; self.r = set().union(*R[1:])
            else:
                self.r = allr
        elif self.vmem:
            if self.ldsdma:
                self.r = allr | {("x", "m0")}
            elif "_load" in mn:
                self.w = R[0]; self.r = set().union(*R[1:])
            elif "atomic" in mn:
                self.r = allr
                if re.search(r"\bsc0\b", rest):
                    self.w = R[0]
            elif "_store" in mn:
                self.r = allr
                if mn.endswith(("x3", "x4")):
                    self.widestore = R[0] if mn.startswith("buffer") else R[1]
            else:
                self.r = allr
        elif self.salu:
            if mn.startswith(("s_cmp", "s_cbranch", "s_branch", "s_waitcnt", "s_nop", "s_barrier", "s_endpgm", "s_sleep", "s_setprio", "s_bitcmp")):
                self.r = allr
            else:
                self.w = set(R[0]) if R else set()
                self.r = set().union(*R[1:]) if len(R) > 1 else set()
                if "saveexec" in mn:
                    self.w.add(("x", "exec"))

def need(p, c):
    n = 0
    vw = {r for r in p.w if r[0] in "va"}
    sw = {r for r in p.w if r[0] == "s" or r == ("x", "vcc")}
    if p.valu:
        if c.mfma and vw & c.r: n = max(n, 2)
        if p.trans and c.valu and not c.trans and vw & c.r: n = max(n, 1)
        if p.trans and c.valu and c.trans and vw & c.r: n = max(n, 1)
        if c.readlane and vw & c.r: n = max(n, 1)
        if (c.permlane or c.dpp) and vw & c.r: n = max(n, 2)
        if c.valu and sw & c.r: n = max(n, 4 if c.readlane or c.mn.startswith("v_writelane") else 2)
        if c.vmem and sw & c.r: n = max(n, 5)
        if "op_sel" in p.text or "sdwa" in p.text:
            if c.valu and vw & (c.r | c.w): n = max(n, 1)
    if p.ds or p.vmem:
        pass
    if p.mfma:
        big = {4: 8, 8: 12}[p.passes]
        if c.mfma:
            if vw & (c.A | c.B): n = max(n, big)
            if vw & c.C:
                if not (c.C == p.w and c.passes == p.passes): n = max(n, big - 2)
            if vw & c.w and not (c.w == p.w and c.C == p.w and c.passes == p.passes):
                n = max(n, big - 2)
        elif c.valu or c.ds or c.vmem:
            if vw & (c.r | c.w): n = max(n, big)
        if c.valu and p.C & c.w: n = max(n, {4: 3, 8: 7}[p.passes])
    if p.salu and ("x", "m0") in p.w and c.ldsdma: n = max(n, 1)
    if p.widestore:
        if p.widestore & c.w: n = max(n, 2 if c.valu else 1)
    return n

def pad(lines):
    out = []
    hists = [[]]
    pending = {}
    seen = set()
    back = []
    H = 24
    for ln in lines:
        s = ln.split(";")[0].strip()
        if not s or s.startswith("."):
            out.append(ln); continue
        if s.endswith(":"):
            lab = s[:-1]
            seen.add(lab)
            hists = hists + pending.pop(lab, [])
            out.append(ln); continue
        c = Ins(ln)
        req = 0
        for h in hists:
            d = 0
            for p in reversed(h):
                k = need(p, c)
                if k - d > req: req = k - d
                d += p.states
                if d >= 20: break
        while req > 0:
            k = min(req, 16)
            nop = Ins(f"s_nop {k-1}")
            out.append(f"s_nop {k-1}")
            hists = [(h + [nop])[-H:] for h in hists]
            req -= k
        out.append(ln)
        hists = [(h + [c])[-H:] for h in hists]
        uniq = {}
        for h in hists:
            uniq[tuple(id(x) for x in h[-20:])] = h
        hists = list(uniq.values())
        if c.mn.startswith(("s_cbranch", "s_branch")):
            tgt = c.ops[0]
            if tgt in seen:
                back.append(tgt)
            else:
                pending.setdefault(tgt, []).extend([list(h) for h in hists])
            if c.mn == "s_branch":
                hists = []
        if c.mn == "s_endpgm":
            hists = []
        if not hists:
            hists = [[]]
    return out
```

```python
import sys
from asmlib import *

NAME = "parallel_sum__gqa_block_cached__dense_activation_squared_relu__decode"
KNAME = NAME + "_kernel"

QP, HP, ML, OP, FP, ST = 0x0, 0x40000, 0x80000, 0x100000, 0x200000, 0x400000
WS_SIZE = 0x800000
OOB = 0x10000000
L_K = 0
L_W = 0
L_OS = 0x10000
L_XN = 0x20000
XNS = 1024 + 16
L_S1 = L_XN + 8 * XNS
S1W = 2048 + 128
S1R = 272
L_Q = L_S1 + 8 * S1W
QS = 256 + 16
L_H = L_Q + 8 * QS
L_O = L_H + 8 * QS
L_ML = L_O + 8 * QS
LDS_BYTES = 163840
assert L_ML + 512 <= LDS_BYTES
LOG2E = 0x3fb8aa3b
SCALE = 0x3db504f3
SPIN_LIMIT = 200000

def gen(D=3, FL="nt", FSLOT=24, stamps=False, hs="sc1"):
    a = Asm()
    S = Alloc("s", 30, 102)
    V = Alloc("v", 1, 256)
    stamp_regs = []
    def stamp(name):
        if stamps:
            r = S(2)
            stamp_regs.append((name, r))
            a(f"s_memrealtime {r}")

    a.label(KNAME)
    stamp("start")
    a("s_cmp_ge_u32 s2, 256")
    a("s_cbranch_scc1 L_end")
    a("s_load_dwordx16 s[4:19], s[0:1], 0")
    a("s_load_dwordx8 s[20:27], s[0:1], 64")
    a("s_load_dwordx2 s[28:29], s[0:1], 96")
    sX, sK, sV, sS1, sWO, sW2, sB1, sB2, sOUT, sDBG, sWS = [S(4) for _ in range(11)]
    lane = V(); t0 = V(); t1 = V(); t2 = V(); t3 = V()
    wv = "s3"
    a(f"v_lshrrev_b32 {t0}, 6, v0")
    a(f"v_and_b32 {lane}, 63, v0")
    a(f"v_readfirstlane_b32 {wv}, {t0}")
    st0, st1, st2 = S(), S(), S()
    sStride, sS1off, sS1step, sKh = S(), S(), S(), S()
    sLdsW = S()
    a(f"s_and_b32 {sKh}, s2, 1")
    a(f"s_mov_b32 {sStride}, 7168")
    a("s_cmp_lt_u32 s2, 128")
    a(f"s_cselect_b32 {sStride}, 8192, {sStride}")
    a(f"s_and_b32 {st0}, s2, 127")
    a(f"s_lshr_b32 {st0}, {st0}, 1")
    a(f"s_lshl_b32 {st1}, {sKh}, 9")
    a(f"s_lshl_b32 {st2}, {wv}, 6")
    a(f"s_add_u32 {st1}, {st1}, {st2}")
    a(f"s_mul_i32 {st1}, {st1}, {sStride}")
    a(f"s_lshl_b32 {st2}, {st0}, 7")
    a(f"s_add_u32 {sS1off}, {st1}, {st2}")
    a(f"s_lshl_b32 {sS1step}, {sStride}, 3")
    a(f"s_lshl_b32 {sLdsW}, {wv}, 14")
    sPub = S()
    a("s_cmp_lt_u32 s2, 128")
    a(f"s_cselect_b32 {sPub}, {QP}, {HP}")
    a(f"s_lshl_b32 {st1}, {sStride}, 4")
    a(f"s_mul_i32 {st1}, {st1}, {sKh}")
    a(f"s_add_u32 {sPub}, {sPub}, {st1}")
    a(f"s_lshl_b32 {st1}, {st0}, 8")
    a(f"s_add_u32 {sPub}, {sPub}, {st1}")
    a("s_cmp_lt_u32 s2, 240")
    a(f"s_cselect_b32 {sPub}, {sPub}, {OOB}")
    l16 = V()
    a(f"v_lshlrev_b32 {l16}, 4, {lane}")
    vS1 = V(2)
    a(f"v_lshrrev_b32 {t0}, 3, {lane}")
    a(f"v_and_b32 {t1}, 7, {lane}")
    a(f"v_and_b32 {t2}, 2, {t0}")
    a(f"v_xor_b32 {t1}, {t1}, {t2}")
    a(f"v_lshlrev_b32 {t1}, 4, {t1}")
    a(f"v_mul_lo_u32 {t0}, {t0}, {sStride}")
    a(f"v_add_u32 {vS1[0]}, {t0}, {t1}")
    a(f"v_xor_b32 {t1}, 64, {t1}")
    a(f"v_add_u32 {vS1[1]}, {t0}, {t1}")
    sXa, sXb = S(), S()
    a(f"s_lshl_b32 {st1}, {wv}, 11")
    a(f"s_lshl_b32 {st2}, {sKh}, 10")
    a(f"s_add_u32 {sXa}, {st1}, {st2}")
    a(f"s_xor_b32 {sXb}, {sXa}, 1024")
    a("s_waitcnt lgkmcnt(0)")
    def srd(r, lo, size):
        a(f"s_mov_b32 {r[0]}, s{lo}")
        a(f"s_and_b32 {r[1]}, s{lo+1}, 0xffff")
        a(f"s_mov_b32 {r[2]}, {size}")
        a(f"s_mov_b32 {r[3]}, 0x20000")
    srd(sX, 4, 16384)
    xa, xb = V(4), V(4)
    a.vmem(f"buffer_load_dwordx4 {xa}, {l16}, {sX}, {sXa} offen", "xa")
    a.vmem(f"buffer_load_dwordx4 {xb}, {l16}, {sX}, {sXb} offen", "xb")
    a("s_cmp_lt_u32 s2, 128")
    a(f"s_cselect_b32 {sS1[0]}, s10, s16")
    a(f"s_cselect_b32 {sS1[1]}, s11, s17")
    a(f"s_and_b32 {sS1[1]}, {sS1[1]}, 0xffff")
    a(f"s_lshl_b32 {sS1[2]}, {sStride}, 10")
    a("s_cmp_lt_u32 s2, 240")
    a(f"s_cselect_b32 {sS1[2]}, {sS1[2]}, 0")
    a(f"s_mov_b32 {sS1[3]}, 0x20000")
    big = []
    for i in range(8):
        a(f"s_add_u32 m0, {sLdsW}, {8192 + 1024*i}")
        a.vmem(f"buffer_load_dwordx4 {vS1[i&1]}, {sS1}, {sS1off} offen {FL} lds", f"S{i}")
        big.append(f"S{i}")
        if i < 7:
            a(f"s_add_u32 {sS1off}, {sS1off}, {sS1step}")
    srd(sK, 6, 1 << 25); srd(sV, 8, 1 << 25); srd(sWO, 12, 1 << 23); srd(sW2, 20, 3584*2048)
    srd(sB1, 18, 7168); srd(sB2, 22, 2048); srd(sOUT, 24, 16384); srd(sDBG, 26, 256); srd(sWS, 28, WS_SIZE)
    S.give(4, 30); S.give(sS1)
    sB, sG, sSp, sHf, sN = S(), S(), S(), S(), S()
    a(f"s_lshr_b32 {sB}, s2, 5")
    a(f"s_lshr_b32 {sG}, s2, 3")
    a(f"s_and_b32 {sG}, {sG}, 3")
    a(f"s_and_b32 {sSp}, s2, 7")
    a(f"s_and_b32 {sHf}, s2, 31")
    a(f"s_lshr_b32 {sN}, s2, 5")
    vOPp = V(); vClr = V(); vMLp = V()
    tq = V()
    a(f"v_and_b32 {tq}, 255, v0")
    a(f"s_lshl_b32 {st0}, {sG}, 18")
    a(f"s_lshl_b32 {st1}, {sB}, 12")
    a(f"s_add_u32 {st0}, {st0}, {st1}")
    a(f"s_lshl_b32 {st1}, {sSp}, 9")
    a(f"s_add_u32 {st0}, {st0}, {st1}")
    a(f"s_add_u32 {st0}, {st0}, {OP}")
    a(f"v_lshrrev_b32 {t0}, 5, {tq}")
    a(f"v_lshlrev_b32 {t0}, 15, {t0}")
    a(f"v_and_b32 {t1}, 31, {tq}")
    a(f"v_lshl_add_u32 {t0}, {t1}, 4, {t0}")
    a(f"v_add_u32 {vOPp}, {st0}, {t0}")
    sFPb = S()
    a(f"s_lshl_b32 {sFPb}, {sN}, 17")
    a(f"s_lshl_b32 {st1}, {sHf}, 7")
    a(f"s_add_u32 {sFPb}, {sFPb}, {st1}")
    a(f"s_add_u32 {sFPb}, {sFPb}, {FP}")
    a(f"v_lshrrev_b32 {t0}, 3, {tq}")
    a(f"v_lshlrev_b32 {t0}, 12, {t0}")
    a(f"v_and_b32 {t1}, 7, {tq}")
    a(f"v_lshl_add_u32 {t0}, {t1}, 4, {t0}")
    a(f"v_add_u32 {t0}, {sFPb}, {t0}")
    a(f"v_cmp_gt_u32 vcc, 256, v0")
    a(f"v_cndmask_b32 {vClr}, {t0}, {vOPp}, vcc")
    a(f"s_lshl_b32 {st0}, {sG}, 12")
    a(f"s_lshl_b32 {st1}, {sB}, 6")
    a(f"s_add_u32 {st0}, {st0}, {st1}")
    a(f"s_lshl_b32 {st1}, {sSp}, 3")
    a(f"s_add_u32 {st0}, {st0}, {st1}")
    a(f"s_add_u32 {st0}, {st0}, {ML}")
    a(f"v_lshlrev_b32 {t0}, 9, v0")
    a(f"v_add_u32 {t0}, {st0}, {t0}")
    a(f"v_mov_b32 {t1}, {OOB}")
    a(f"v_cmp_gt_u32 vcc, 8, v0")
    a(f"v_cndmask_b32 {vMLp}, {t1}, {t0}, vcc")
    ones = V(4)
    for i in range(4):
        a(f"v_mov_b32 {ones[i]}, -1")
    a.vmem(f"buffer_store_dwordx4 {ones}, {vClr}, {sWS}, 0 offen {hs}", "clr0")
    a.vmem(f"buffer_store_dwordx2 {ones[0:2]}, {vMLp}, {sWS}, 0 offen {hs}", "clr1")
    vOut = V(); xo = V(2); b2o = V(2); b1o = V(2)
    a(f"s_lshr_b32 {st0}, {sHf}, 2")
    a(f"s_lshl_b32 {st0}, {st0}, 5")
    a(f"s_lshl_b32 {st1}, {sN}, 8")
    a(f"s_add_u32 {st0}, {st0}, {st1}")
    a(f"v_and_b32 {t0}, 3, {lane}")
    a(f"v_lshl_add_u32 {t0}, {t0}, 3, {st0}")
    a(f"s_and_b32 {st1}, {sHf}, 3")
    a(f"s_lshl_b32 {st1}, {st1}, 12")
    a(f"v_bfe_u32 {t1}, {lane}, 2, 1")
    a(f"v_lshl_add_u32 {t1}, {t1}, 11, {st1}")
    a(f"v_add_u32 {vOut}, {t0}, {t1}")
    a.vmem(f"buffer_load_dwordx2 {xo}, {vOut}, {sX}, 0 offen", "xo")
    a.vmem(f"buffer_load_dwordx2 {b2o}, {t0}, {sB2}, 0 offen", "b2o")
    vG0 = V(); vG1 = V(); vGl = V()
    a(f"s_lshl_b32 {st0}, {sB}, 14")
    a(f"s_lshl_b32 {st1}, {sG}, 12")
    a(f"s_add_u32 {st0}, {st0}, {st1}")
    a(f"v_lshl_add_u32 {t0}, {tq}, 4, {st0}")
    assert QP == 0
    a(f"s_mul_i32 {st0}, {sHf}, 448")
    a(f"s_add_u32 {st0}, {st0}, {HP}")
    a(f"v_lshrrev_b32 {t1}, 5, {tq}")
    a(f"v_mul_u32_u24 {t1}, 14336, {t1}")
    a(f"v_and_b32 {t2}, 31, {tq}")
    a(f"v_lshl_add_u32 {t1}, {t2}, 4, {t1}")
    a(f"v_add_u32 {t1}, {st0}, {t1}")
    a(f"v_mov_b32 {t3}, {OOB}")
    a(f"v_cmp_gt_u32 vcc, 28, {t2}")
    a(f"v_cndmask_b32 {t1}, {t3}, {t1}, vcc")
    a(f"s_mul_i32 {st0}, {sHf}, 224")
    a(f"v_lshl_add_u32 {t2}, {t2}, 3, {st0}")
    a(f"v_cndmask_b32 {t2}, {t3}, {t2}, vcc")
    a(f"v_cmp_gt_u32 vcc, 256, v0")
    a(f"v_cndmask_b32 {vG0}, {t1}, {t0}, vcc")
    a(f"v_cndmask_b32 {t2}, {t2}, {t3}, vcc")
    a.vmem(f"buffer_load_dwordx2 {b1o}, {t2}, {sB1}, 0 offen", "b1o")
    S.give(sX); S.give(sB1); S.give(sB2)
    a(f"v_mov_b32 {t0}, 114688")
    a(f"v_mov_b32 {t1}, 131072")
    a(f"v_cndmask_b32 {t0}, {t0}, {t1}, vcc")
    a(f"v_add_u32 {vG1}, {vG0}, {t0}")
    a(f"v_lshrrev_b32 {t0}, 5, v0")
    a(f"v_mul_u32_u24 {t0}, {QS}, {t0}")
    a(f"v_and_b32 {t1}, 31, v0")
    a(f"v_lshl_add_u32 {t0}, {t1}, 3, {t0}")
    a(f"v_add_u32 {vGl}, {L_Q}, {t0}")
    assert L_H == L_Q + 8 * QS and L_O == L_H + 8 * QS
    vK = V(4)
    a(f"v_lshrrev_b32 {t0}, 4, {lane}")
    a(f"v_and_b32 {t1}, 15, {lane}")
    a(f"v_lshlrev_b32 {t2}, 2, {t0}")
    a(f"v_xor_b32 {t1}, {t1}, {t2}")
    for p in range(4):
        a(f"v_xor_b32 {t2}, {p}, {t1}")
        a(f"v_lshlrev_b32 {t2}, 4, {t2}")
        a(f"v_lshl_add_u32 {vK[p]}, {t0}, 8, {t2}")
    sKV, sRot = S(), S()
    a(f"s_lshl_b32 {sKV}, s2, 17")
    a(f"s_add_u32 {sKV}, {sKV}, {sLdsW}")
    a(f"s_lshl_b32 {sRot}, {wv}, 1")
    a(f"s_lshr_b32 {st0}, s2, 3")
    a(f"s_add_u32 {sRot}, {sRot}, {st0}")
    vWo, vW2 = V(), V()
    a(f"v_and_b32 {t1}, 15, {lane}")
    a(f"v_lshlrev_b32 {t2}, 1, {t0}")
    a(f"v_xor_b32 {t1}, {t1}, {t2}")
    a(f"s_lshl_b32 {st0}, {wv}, 2")
    a(f"s_and_b32 {st0}, {st0}, 8")
    a(f"v_xor_b32 {t1}, {st0}, {t1}")
    a(f"v_lshlrev_b32 {t1}, 4, {t1}")
    a(f"v_lshl_add_u32 {vWo}, {t0}, 14, {t1}")
    a(f"v_lshl_add_u32 {vW2}, {t0}, 11, {t1}")
    sWo, sW2o = S(), S()
    a(f"s_and_b32 {st0}, {wv}, 3")
    a(f"s_lshl_b32 {st0}, {st0}, 5")
    a(f"s_lshr_b32 {st1}, {wv}, 2")
    a(f"s_add_u32 {st0}, {st0}, {st1}")
    a(f"s_lshl_b32 {st1}, {sHf}, 7")
    a(f"s_add_u32 {st0}, {st0}, {st1}")
    a(f"s_lshl_b32 {st0}, {st0}, 11")
    a(f"s_lshl_b32 {st1}, {sN}, 8")
    a(f"s_add_u32 {sWo}, {st0}, {st1}")
    a(f"s_mul_i32 {st0}, {sHf}, 112")
    a(f"s_lshl_b32 {st2}, {wv}, 2")
    a(f"s_add_u32 {st0}, {st0}, {st2}")
    a(f"s_lshl_b32 {st0}, {st0}, 11")
    a(f"s_add_u32 {sW2o}, {st0}, {st1}")

    vV = V(64)
    state = {"n": 8}
    def issue(count=1, paced=True):
        for _ in range(count):
            n = state["n"]
            if n >= 48: return
            if paced and n - D >= 0:
                a.wait_vm(big[n - D])
            if n < 40:
                p = (n - 8) & 15
                a(f"s_add_u32 {st0}, {sRot}, {p}")
                a(f"s_and_b32 {st0}, {st0}, 15")
                a(f"s_lshl_b32 {st0}, {st0}, 10")
                a(f"s_add_u32 {st0}, {st0}, {sKV}")
                if n < 24:
                    a(f"s_add_u32 m0, {sLdsW}, {1024*p}")
                    a.vmem(f"buffer_load_dwordx4 {vK[p&3]}, {sK}, {st0} offen {FL} lds", f"K{p}")
                    big.append(f"K{p}")
                else:
                    a.vmem(f"buffer_load_dwordx4 {vV[4*p:4*p+4]}, {l16}, {sV}, {st0} offen {FL}", f"V{p}")
                    big.append(f"V{p}")
            else:
                it = (n - 40) & 3
                a(f"s_lshl_b32 {st1}, {wv}, 10")
                if n < 44:
                    a(f"s_add_u32 {st0}, {sWo}, {it*2*2048}")
                    a(f"s_add_u32 m0, {st1}, {L_W + it*8192}")
                    a.vmem(f"buffer_load_dwordx4 {vWo}, {sWO}, {st0} offen {FL} lds", f"W{n-40}")
                else:
                    a(f"s_add_u32 {st0}, {sW2o}, {it*32*2048}")
                    if it == 3:
                        a(f"s_cmp_lt_u32 {wv}, 4")
                        a(f"s_cselect_b32 {st0}, {st0}, {OOB}")
                    a(f"s_add_u32 m0, {st1}, {L_W + 32768 + it*8192}")
                    a.vmem(f"buffer_load_dwordx4 {vW2}, {sW2}, {st0} offen {FL} lds", f"W{n-40}")
                big.append(f"W{n-40}")
            state["n"] = n + 1
    def issue_until(n):
        issue(n - state["n"])

    def allsum(r, tmp, op="add"):
        for k in (8, 4, 2, 1):
            a(f"v_{op}_f32_dpp {r}, {r}, {r} row_ror:{k} row_mask:0xf bank_mask:0xf")
        rowsum(r, tmp, op)
    def rowsum(r, tmp, op="add"):
        a(f"v_mov_b32 {tmp}, {r}")
        a(f"v_permlane16_swap_b32 {r}, {tmp}")
        a(f"v_{op}_f32 {r}, {r}, {tmp}")
        a(f"v_mov_b32 {tmp}, {r}")
        a(f"v_permlane32_swap_b32 {r}, {tmp}")
        a(f"v_{op}_f32 {r}, {r}, {tmp}")
    def unpack(dst_lo, dst_hi, src):
        a(f"v_and_b32 {dst_hi}, 0xffff0000, {src}")
        a(f"v_lshlrev_b32 {dst_lo}, 16, {src}")

    m0_ = V.mark()
    f = V(16)
    a.wait_vm("xb")
    stamp("x")
    for i in range(4):
        unpack(f[2*i], f[2*i+1], xa[i])
        unpack(f[8+2*i], f[8+2*i+1], xb[i])
    sa, sb = V(), V()
    a(f"v_add_f32 {sa}, {f[0]}, {f[1]}")
    a(f"v_add_f32 {sb}, {f[8]}, {f[9]}")
    for i in range(2, 8):
        a(f"v_add_f32 {sa}, {sa}, {f[i]}")
        a(f"v_add_f32 {sb}, {sb}, {f[8+i]}")
    a(f"v_add_f32 {sa}, {sa}, {sb}")
    allsum(sa, t0)
    mu = V()
    a(f"v_mul_f32 {mu}, 0x3a800000, {sa}")
    a(f"v_sub_f32 {t0}, {f[0]}, {mu}")
    a(f"v_sub_f32 {t1}, {f[8]}, {mu}")
    a(f"v_mul_f32 {sa}, {t0}, {t0}")
    a(f"v_mul_f32 {sb}, {t1}, {t1}")
    for i in range(1, 8):
        a(f"v_sub_f32 {t0}, {f[i]}, {mu}")
        a(f"v_sub_f32 {t1}, {f[8+i]}, {mu}")
        a(f"v_fmac_f32 {sa}, {t0}, {t0}")
        a(f"v_fmac_f32 {sb}, {t1}, {t1}")
    a(f"v_add_f32 {sa}, {sa}, {sb}")
    allsum(sa, t0)
    a(f"v_mul_f32 {sa}, 0x3a800000, {sa}")
    a(f"v_cvt_pk_bf16_f32 {t0}, {mu}, {sa}")
    unpack(mu, sa, t0)
    a(f"v_add_f32 {sa}, 0x3727c5ac, {sa}")
    a(f"v_cvt_pk_bf16_f32 {t0}, {sa}, {sa}")
    a(f"v_lshlrev_b32 {sa}, 16, {t0}")
    a(f"v_sqrt_f32 {sa}, {sa}")
    a(f"v_cvt_pk_bf16_f32 {t0}, {sa}, {sa}")
    a(f"v_lshlrev_b32 {sa}, 16, {t0}")
    a(f"v_rcp_f32 {sb}, {sa}")
    for i in range(4):
        a(f"v_sub_f32 {t0}, {f[2*i]}, {mu}")
        a(f"v_sub_f32 {t1}, {f[2*i+1]}, {mu}")
        a(f"v_cvt_pk_bf16_f32 {t0}, {t0}, {t1}")
        unpack(f[2*i], f[2*i+1], t0)
        for k in (2*i, 2*i+1):
            a(f"v_mul_f32 {t0}, {f[k]}, {sb}")
            a(f"v_fma_f32 {t1}, -{t0}, {sa}, {f[k]}")
            a(f"v_fma_f32 {f[k]}, {t1}, {sb}, {t0}")
        a(f"v_cvt_pk_bf16_f32 {xa[i]}, {f[2*i]}, {f[2*i+1]}")
    a(f"s_mul_i32 {st0}, {wv}, {XNS}")
    a(f"s_add_u32 {st0}, {st0}, {L_XN}")
    a(f"v_add_u32 {t0}, {st0}, {l16}")
    a(f"ds_write_b128 {t0}, {xa}")
    V.release(m0_)
    lj = V(); lb = V()
    a(f"v_lshrrev_b32 {lj}, 4, {lane}")
    a(f"v_and_b32 {lb}, 7, {lane}")
    m1_ = V.mark()
    vXn = V(); vTr = V(4)
    a(f"v_mul_u32_u24 {t0}, {XNS}, {lb}")
    a(f"v_lshl_add_u32 {t0}, {lj}, 4, {t0}")
    a(f"s_lshl_b32 {st0}, {wv}, 7")
    a(f"s_add_u32 {st0}, {st0}, {L_XN}")
    a(f"v_add_u32 {vXn}, {st0}, {t0}")
    a(f"v_bfe_u32 {t0}, {lane}, 2, 2")
    a(f"v_lshl_add_u32 {t1}, {lj}, 3, {t0}")
    a(f"v_lshlrev_b32 {t1}, 7, {t1}")
    a(f"v_and_b32 {t2}, 1, {lane}")
    a(f"v_lshl_add_u32 {t1}, {t2}, 3, {t1}")
    a(f"s_add_u32 {st0}, {sLdsW}, 8192")
    a(f"v_add_u32 {t1}, {st0}, {t1}")
    a(f"v_and_b32 {t0}, 2, {t0}")
    a(f"v_and_b32 {t2}, 1, {lj}")
    a(f"v_lshl_or_b32 {t0}, {t2}, 2, {t0}")
    a(f"v_bfe_u32 {t2}, {lane}, 1, 1")
    a(f"v_or_b32 {t0}, {t0}, {t2}")
    for ct in range(4):
        a(f"v_xor_b32 {t2}, {2*ct}, {t0}")
        a(f"v_lshl_add_u32 {vTr[ct]}, {t2}, 4, {t1}")
    a("s_waitcnt lgkmcnt(0)")
    a("s_barrier")
    stamp("B1")
    xnb = V(8)
    a(f"ds_read_b128 {xnb[0:4]}, {vXn}")
    a(f"ds_read_b128 {xnb[4:8]}, {vXn} offset:64")
    issue_until(8 + D)
    a.wait_vm("b1o")
    stamp("S1landed")
    wt = V(32); acc1 = V(16)
    for ct in range(4):
        for t in range(2):
            for hf in range(2):
                o = (ct*2 + t)*4 + hf*2
                a(f"ds_read_b64_tr_b16 {wt[o:o+2]}, {vTr[ct]} offset:{t*4096 + hf*512}")
    a("s_waitcnt lgkmcnt(0)")
    for t in range(2):
        for ct in range(4):
            o = (ct*2 + t)*4
            c = "0" if t == 0 else str(acc1[4*ct:4*ct+4])
            a(f"v_mfma_f32_16x16x32_bf16 {acc1[4*ct:4*ct+4]}, {wt[o:o+4]}, {xnb[4*t:4*t+4]}, {c}")
    sHalf = S(2)
    a(f"s_mov_b32 {sHalf[0]}, 0x00ff00ff")
    a(f"s_mov_b32 {sHalf[1]}, 0x00ff00ff")
    a(f"v_mul_u32_u24 {t0}, {S1R}, {lb}")
    a(f"v_lshl_add_u32 {t0}, {lj}, 4, {t0}")
    a(f"s_mul_i32 {st0}, {wv}, {S1W}")
    a(f"s_add_u32 {st0}, {st0}, {L_S1}")
    a(f"v_add_u32 {t0}, {st0}, {t0}")
    a(f"s_mov_b64 exec, {sHalf}")
    for ct in range(4):
        a(f"ds_write_b128 {t0}, {acc1[4*ct:4*ct+4]} offset:{64*ct}")
    a("s_mov_b64 exec, -1")
    a("s_waitcnt lgkmcnt(0)")
    a("s_barrier")
    a(f"s_cmp_lg_u32 {wv}, 0")
    a("s_cbranch_scc1 L_nopub1")
    a(f"v_mul_u32_u24 {t0}, {S1R}, {lj}")
    a(f"v_and_b32 {t1}, 15, {lane}")
    a(f"v_lshl_add_u32 {t0}, {t1}, 4, {t0}")
    a(f"v_add_u32 {t0}, {L_S1}, {t0}")
    a(f"s_lshl_b32 {st1}, {sStride}, 1")
    a(f"v_mul_lo_u32 {t2}, {lj}, {st1}")
    a(f"v_lshl_add_u32 {t2}, {t1}, 4, {t2}")
    a(f"s_lshl_b32 {st1}, {sStride}, 3")
    a(f"s_add_u32 {st1}, {st1}, {sPub}")
    for hb in range(2):
        for w_ in range(8):
            a(f"ds_read_b128 {wt[4*w_:4*w_+4]}, {t0} offset:{w_*S1W + hb*4*S1R}")
        a("s_waitcnt lgkmcnt(0)")
        d = acc1[4*hb:4*hb+4]
        for k in range(0, 4, 2):
            a(f"v_pk_add_f32 {d[k:k+2]}, {wt[k:k+2]}, {wt[4+k:6+k]}")
        for w_ in range(2, 8):
            for k in range(0, 4, 2):
                a(f"v_pk_add_f32 {d[k:k+2]}, {d[k:k+2]}, {wt[4*w_+k:4*w_+k+2]}")
        a(f"buffer_store_dwordx4 {d}, {t2}, {sWS}, {sPub if hb == 0 else st1} offen {hs}")
    a.label("L_nopub1")
    pubpos = len(a.vm)
    V.release(m1_)
    issue(D)
    a(f"s_cmp_lg_u32 {wv}, 0")
    a("s_cbranch_scc1 L_noflag")
    a(f"s_waitcnt vmcnt({len(a.vm) - pubpos})")
    a(f"s_and_b32 {st0}, s2, 3")
    a(f"s_lshl_b32 {st0}, {st0}, 3")
    a(f"s_lshl_b32 {st0}, 1, {st0}")
    a(f"v_mov_b32 {t0}, {st0}")
    a(f"s_and_b32 {st1}, s2, 0xfc")
    a("s_mov_b64 exec, 1")
    a(f"buffer_atomic_or {t0}, off, {sDBG}, {st1} sc1")
    a("s_mov_b64 exec, -1")
    stamp("flag")
    a.label("L_noflag")
    issue_until(FSLOT)
    l4 = V(); fl = V()
    a(f"v_lshlrev_b32 {l4}, 2, {lane}")
    a.vmem(f"buffer_load_dword {fl}, {l4}, {sDBG}, 0 offen sc1", "F")
    issue(D)
    a.wait_vm("F")
    sSpin = S()
    a(f"s_mov_b32 {sSpin}, 0")
    a.label("L_fcheck")
    a(f"v_cmp_ne_u32 vcc, 0x01010101, {fl}")
    a("s_cbranch_vccz L_fok")
    a(f"s_add_u32 {sSpin}, {sSpin}, 1")
    a(f"s_cmp_gt_u32 {sSpin}, {SPIN_LIMIT}")
    a("s_cbranch_scc1 L_fok")
    a("s_sleep 4")
    a(f"buffer_load_dword {fl}, {l4}, {sDBG}, 0 offen sc1")
    a("s_waitcnt vmcnt(0)")
    a("s_branch L_fcheck")
    a.label("L_fok")
    stamp("fok")
    m2_ = V.mark()
    g0, g1 = V(4), V(4)
    a.vmem(f"buffer_load_dwordx4 {g0}, {vG0}, {sWS}, 0 offen sc1", "G0")
    a.vmem(f"buffer_load_dwordx4 {g1}, {vG1}, {sWS}, 0 offen sc1", "G1")
    issue(D)
    a.wait_vm("G1")
    a(f"v_pk_add_f32 {g0[0:2]}, {g0[0:2]}, {g1[0:2]}")
    a(f"v_pk_add_f32 {g0[2:4]}, {g0[2:4]}, {g1[2:4]}")
    a(f"v_cvt_pk_bf16_f32 {g1[0]}, {g0[0]}, {g0[1]}")
    a(f"v_cvt_pk_bf16_f32 {g1[1]}, {g0[2]}, {g0[3]}")
    a(f"s_cmp_lt_u32 {wv}, 4")
    a("s_cbranch_scc1 L_isq")
    for k in range(2):
        unpack(g0[0], g0[1], g1[k])
        unpack(g0[2], g0[3], b1o[k])
        a(f"v_add_f32 {g0[0]}, {g0[0]}, {g0[2]}")
        a(f"v_add_f32 {g0[1]}, {g0[1]}, {g0[3]}")
        a(f"v_cvt_pk_bf16_f32 {t0}, {g0[0]}, {g0[1]}")
        unpack(g0[0], g0[1], t0)
        a(f"v_max_f32 {g0[0]}, 0, {g0[0]}")
        a(f"v_max_f32 {g0[1]}, 0, {g0[1]}")
        a(f"v_mul_f32 {g0[0]}, {g0[0]}, {g0[0]}")
        a(f"v_mul_f32 {g0[1]}, {g0[1]}, {g0[1]}")
        a(f"v_cvt_pk_bf16_f32 {g1[k]}, {g0[0]}, {g0[1]}")
    a.label("L_isq")
    a(f"ds_write_b64 {vGl}, {g1[0:2]}")
    V.release(m2_)
    vQr = V()
    a(f"v_mul_u32_u24 {t0}, {QS}, {lb}")
    a(f"v_lshl_add_u32 {t0}, {lj}, 4, {t0}")
    a(f"v_add_u32 {vQr}, {L_Q}, {t0}")
    P = V(8)
    acc = V(32)
    m3_ = V.mark()
    vKr = V(4)
    a(f"v_and_b32 {t0}, 15, {lane}")
    a(f"v_and_b32 {t1}, 3, {lane}")
    a(f"v_lshlrev_b32 {t1}, 10, {t1}")
    a(f"v_bfe_u32 {t2}, {lane}, 2, 2")
    a(f"v_lshl_add_u32 {t1}, {t2}, 8, {t1}")
    a(f"v_add_u32 {t1}, {sLdsW}, {t1}")
    a(f"v_xor_b32 {t0}, {t0}, {lj}")
    for t in range(4):
        a(f"v_xor_b32 {t2}, {4*t}, {t0}")
        a(f"v_lshl_add_u32 {vKr[t]}, {t2}, 4, {t1}")
    a("s_waitcnt lgkmcnt(0)")
    a("s_barrier")
    stamp("B4")
    assert state["n"] - D >= 24, "K must have landed before QK"
    qb = V(16); kt = V(32); sc = V(16)
    for t in range(4):
        a(f"ds_read_b128 {qb[4*t:4*t+4]}, {vQr} offset:{64*t}")
    for half in range(2):
        for T2 in range(2):
            for t in range(4):
                o = (T2*4 + t)*4
                a(f"ds_read_b128 {kt[o:o+4]}, {vKr[t]} offset:{(half*2 + T2)*4096}")
        if half == 0:
            issue(1)
        a("s_waitcnt lgkmcnt(0)")
        for t in range(4):
            for T2 in range(2):
                T = half*2 + T2
                o = (T2*4 + t)*4
                c = "0" if t == 0 else str(sc[4*T:4*T+4])
                a(f"v_mfma_f32_16x16x32_bf16 {sc[4*T:4*T+4]}, {kt[o:o+4]}, {qb[4*t:4*t+4]}, {c}")
    for i in range(0, 16, 2):
        a(f"v_cvt_pk_bf16_f32 {t0}, {sc[i]}, {sc[i+1]}")
        unpack(sc[i], sc[i+1], t0)
        a(f"v_mul_f32 {sc[i]}, {hex(SCALE)}, {sc[i]}")
        a(f"v_mul_f32 {sc[i+1]}, {hex(SCALE)}, {sc[i+1]}")
        a(f"v_cvt_pk_bf16_f32 {t0}, {sc[i]}, {sc[i+1]}")
        unpack(sc[i], sc[i+1], t0)
    ml = V(2)
    mw, lw = ml[0], ml[1]
    a(f"v_max3_f32 {mw}, {sc[0]}, {sc[1]}, {sc[2]}")
    for i in range(3, 15, 2):
        a(f"v_max3_f32 {mw}, {mw}, {sc[i]}, {sc[i+1]}")
    a(f"v_max_f32 {mw}, {mw}, {sc[15]}")
    rowsum(mw, t0, "max")
    sL2E = S()
    a(f"s_mov_b32 {sL2E}, {hex(LOG2E)}")
    for i in range(16):
        a(f"v_sub_f32 {sc[i]}, {sc[i]}, {mw}")
        a(f"v_mul_f32 {sc[i]}, {sL2E}, {sc[i]}")
        a(f"v_exp_f32 {sc[i]}, {sc[i]}")
    a(f"v_add_f32 {lw}, {sc[0]}, {sc[1]}")
    for i in range(2, 16):
        a(f"v_add_f32 {lw}, {lw}, {sc[i]}")
    rowsum(lw, t0, "add")
    a(f"s_lshl_b32 {st0}, {wv}, 3")
    a(f"s_add_u32 {st0}, {st0}, {L_ML}")
    a(f"v_lshl_add_u32 {t0}, {lb}, 6, {st0}")
    a("s_mov_b64 exec, 0xff")
    a(f"ds_write_b64 {t0}, {ml}")
    a("s_mov_b64 exec, -1")
    issue(1)
    a(f"v_lshlrev_b32 {t0}, 6, {lb}")
    a("s_waitcnt lgkmcnt(0)")
    a("s_barrier")
    stamp("B5")
    a(f"v_add_u32 {t1}, {L_ML}, {t0}")
    for k in range(4):
        a(f"ds_read_b128 {kt[4*k:4*k+4]}, {t1} offset:{16*k}")
    a("s_waitcnt lgkmcnt(0)")
    def combine_ml(src, M, L, e):
        a(f"v_max3_f32 {M}, {src[0]}, {src[2]}, {src[4]}")
        a(f"v_max3_f32 {M}, {M}, {src[6]}, {src[8]}")
        a(f"v_max3_f32 {M}, {M}, {src[10]}, {src[12]}")
        a(f"v_max_f32 {M}, {M}, {src[14]}")
        for s_ in range(8):
            a(f"v_sub_f32 {e[s_]}, {src[2*s_]}, {M}")
            a(f"v_mul_f32 {e[s_]}, {sL2E}, {e[s_]}")
            a(f"v_exp_f32 {e[s_]}, {e[s_]}")
        a(f"v_mul_f32 {L}, {e[0]}, {src[1]}")
        for s_ in range(1, 8):
            a(f"v_fmac_f32 {L}, {e[s_]}, {src[2*s_+1]}")
    mlg = V(2)
    combine_ml(kt[0:16], mlg[0], mlg[1], kt[16:24])
    a(f"v_sub_f32 {t0}, {mw}, {mlg[0]}")
    a(f"v_mul_f32 {t0}, {sL2E}, {t0}")
    a(f"v_exp_f32 {t0}, {t0}")
    a(f"v_min_u32 {mlg[0]}, -2, {mlg[0]}")
    a(f"v_min_u32 {mlg[1]}, -2, {mlg[1]}")
    a.vmem(f"buffer_store_dwordx2 {mlg}, {vMLp}, {sWS}, 0 offen {hs}", "mlpub")
    for i in range(16):
        a(f"v_mul_f32 {sc[i]}, {t0}, {sc[i]}")
    for i in range(8):
        a(f"v_cvt_pk_bf16_f32 {P[i]}, {sc[2*i]}, {sc[2*i+1]}")
    V.release(m3_)
    vt = V(32)
    sPlo, sPhi = S(), S()
    a(f"s_mov_b32 {sPlo}, 0x05040100")
    a(f"s_mov_b32 {sPhi}, 0x07060302")
    def perm_pair(G, ip):
        x0 = vV[4*(8*G + 2*ip):4*(8*G + 2*ip) + 4]
        x1 = vV[4*(8*G + 2*ip + 1):4*(8*G + 2*ip + 1) + 4]
        for e in range(8):
            a(f"v_perm_b32 {vt[4*e + ip]}, {x1[e>>1]}, {x0[e>>1]}, {sPhi if e & 1 else sPlo}")
    def pv(G):
        for e in range(8):
            c = "0" if G == 0 else str(acc[4*e:4*e+4])
            a(f"v_mfma_f32_16x16x32_bf16 {acc[4*e:4*e+4]}, {vt[4*e:4*e+4]}, {P[4*G:4*G+4]}, {c}")
    issue_until(max(state["n"], 32 + D))
    a.wait_vm("V7")
    for ip in range(4):
        perm_pair(0, ip)
    pv(0)
    issue_until(40)
    mlr = V(16)
    vMLg = V(); vOPg = V()
    a(f"v_lshrrev_b32 {t0}, 5, {tq}")
    a(f"s_lshl_b32 {st0}, {sHf}, 9")
    a(f"s_add_u32 {st0}, {st0}, {ML}")
    a(f"v_lshl_add_u32 {vMLg}, {t0}, 6, {st0}")
    a(f"s_lshl_b32 {st0}, {sHf}, 15")
    a(f"s_add_u32 {st0}, {st0}, {OP}")
    a(f"v_lshl_add_u32 {t0}, {t0}, 12, {st0}")
    a(f"v_and_b32 {t1}, 31, {tq}")
    a(f"v_lshl_add_u32 {vOPg}, {t1}, 4, {t0}")
    a(f"s_cmp_lt_u32 {wv}, 4")
    a("s_cbranch_scc1 L_noml")
    for k in range(4):
        a(f"buffer_load_dwordx4 {mlr[4*k:4*k+4]}, {vMLg}, {sWS}, 0 offen offset:{16*k} sc1")
    a.label("L_noml")
    issue(D - 1)
    a.wait_vm("V13")
    for ip in range(3):
        perm_pair(1, ip)
    issue(48, paced=False)
    vOw = V()
    a(f"v_mul_u32_u24 {t0}, 144, {lj}")
    a(f"v_lshl_add_u32 {t0}, {lb}, 4, {t0}")
    a(f"s_mul_i32 {st0}, {wv}, 4608")
    a(f"s_add_u32 {st0}, {st0}, {L_OS}")
    a(f"v_add_u32 {vOw}, {st0}, {t0}")
    vOr = V()
    a(f"v_and_b32 {t0}, 31, {tq}")
    a(f"v_mul_u32_u24 {t0}, 144, {t0}")
    a(f"v_lshrrev_b32 {t1}, 5, {tq}")
    a(f"v_lshl_add_u32 {t0}, {t1}, 4, {t0}")
    a(f"v_add_u32 {vOr}, {L_OS}, {t0}")
    vWr = V(); vWr2 = V(); vFPp = V()
    a(f"v_bfe_u32 {t0}, {lane}, 2, 2")
    a(f"v_and_b32 {t2}, 1, {lane}")
    a(f"v_lshlrev_b32 {t2}, 3, {t2}")
    a(f"v_bfe_u32 {t3}, {lane}, 1, 1")
    a(f"s_lshl_b32 {st0}, {wv}, 1")
    a(f"v_or_b32 {t3}, {st0}, {t3}")
    a(f"v_lshlrev_b32 {t1}, 1, {t0}")
    a(f"v_xor_b32 {t3}, {t3}, {t1}")
    a(f"v_lshl_add_u32 {t1}, {lj}, 3, {t0}")
    a(f"v_lshl_add_u32 {t1}, {t1}, 8, {t2}")
    a(f"v_and_b32 {vWr}, 1, {lj}")
    a(f"v_lshlrev_b32 {vWr}, 3, {vWr}")
    a(f"v_xor_b32 {vWr}, {vWr}, {t3}")
    a(f"v_lshl_add_u32 {vWr}, {vWr}, 4, {t1}")
    a(f"v_lshl_add_u32 {t1}, {lj}, 2, {t0}")
    a(f"v_lshl_add_u32 {t1}, {t1}, 8, {t2}")
    a(f"v_lshrrev_b32 {vWr2}, 1, {lj}")
    a(f"v_lshlrev_b32 {vWr2}, 3, {vWr2}")
    a(f"v_xor_b32 {vWr2}, {vWr2}, {t3}")
    a(f"v_lshl_add_u32 {vWr2}, {vWr2}, 4, {t1}")
    assert L_W == 0
    a(f"v_lshrrev_b32 {t0}, 1, {lb}")
    a(f"v_lshlrev_b32 {t0}, 12, {t0}")
    a(f"v_and_b32 {t1}, 1, {lb}")
    a(f"v_lshl_add_u32 {t0}, {t1}, 6, {t0}")
    a(f"v_lshl_add_u32 {t0}, {lj}, 4, {t0}")
    a(f"s_lshl_b32 {st0}, {wv}, 14")
    a(f"s_add_u32 {st0}, {st0}, {sFPb}")
    a(f"v_add_u32 {vFPp}, {st0}, {t0}")
    vH2 = V()
    a(f"v_lshlrev_b32 {t0}, 3, {lj}")
    a(f"v_sub_u32 {vH2}, {vQr}, {t0}")
    a.wait_vm("V15")
    stamp("Vlanded")
    perm_pair(1, 3)
    pv(1)
    a(f"s_mov_b64 exec, {sHalf}")
    for e in range(8):
        a(f"ds_write_b128 {vOw}, {acc[4*e:4*e+4]} offset:{576*e}")
    a("s_mov_b64 exec, -1")
    a("s_waitcnt lgkmcnt(0)")
    a("s_barrier")
    g = vV[0:32]
    a(f"s_cmp_ge_u32 {wv}, 4")
    a("s_cbranch_scc1 L_gather")
    for w_ in range(8):
        a(f"ds_read_b128 {g[4*w_:4*w_+4]}, {vOr} offset:{4608*w_}")
    for w_ in range(1, 8):
        if w_ in (1, 4):
            a(f"s_waitcnt lgkmcnt({4 if w_ == 1 else 0})")
        for k in range(0, 4, 2):
            a(f"v_pk_add_f32 {g[k:k+2]}, {g[k:k+2]}, {g[4*w_+k:4*w_+k+2]}")
    for k in range(4):
        a(f"v_min_u32 {g[k]}, -2, {g[k]}")
    a(f"buffer_store_dwordx4 {g[0:4]}, {vOPp}, {sWS}, 0 offen {hs}")
    stamp("Opub")
    a("s_waitcnt vmcnt(1)")
    a("s_branch L_join")
    a.label("L_gather")
    def op_loads():
        for s_ in range(8):
            a(f"buffer_load_dwordx4 {g[4*s_:4*s_+4]}, {vOPg}, {sWS}, 0 offen offset:{512*s_} sc1")
    def maxu(dst, src, n):
        a(f"v_max3_u32 {dst}, {src[0]}, {src[1]}, {src[2]}")
        i = 3
        while i + 1 < n:
            a(f"v_max3_u32 {dst}, {dst}, {src[i]}, {src[i+1]}")
            i += 2
        if i < n:
            a(f"v_max_u32 {dst}, {dst}, {src[i]}")
    op_loads()
    a(f"s_waitcnt vmcnt(16)")
    a(f"s_mov_b32 {sSpin}, 0")
    a.label("L_mlcheck")
    maxu(t0, mlr, 16)
    a(f"v_cmp_eq_u32 vcc, -1, {t0}")
    a("s_cbranch_vccz L_mlok")
    a(f"s_add_u32 {sSpin}, {sSpin}, 1")
    a(f"s_cmp_gt_u32 {sSpin}, {SPIN_LIMIT}")
    a("s_cbranch_scc1 L_mlok")
    for k in range(4):
        a(f"buffer_load_dwordx4 {mlr[4*k:4*k+4]}, {vMLg}, {sWS}, 0 offen offset:{16*k} sc1")
    a("s_waitcnt vmcnt(0)")
    a("s_branch L_mlcheck")
    a.label("L_mlok")
    wgt = vt[0:8]
    combine_ml(mlr, t1, t2, wgt)
    a(f"v_rcp_f32 {t2}, {t2}")
    for s_ in range(8):
        a(f"v_mul_f32 {wgt[s_]}, {wgt[s_]}, {t2}")
    a(f"s_mov_b32 {sSpin}, 0")
    a.label("L_ocheck")
    a("s_waitcnt vmcnt(0)")
    maxu(t0, g, 32)
    a(f"v_cmp_eq_u32 vcc, -1, {t0}")
    a("s_cbranch_vccz L_ook")
    a(f"s_add_u32 {sSpin}, {sSpin}, 1")
    a(f"s_cmp_gt_u32 {sSpin}, {SPIN_LIMIT}")
    a("s_cbranch_scc1 L_ook")
    op_loads()
    a("s_branch L_ocheck")
    a.label("L_ook")
    stamp("Ook")
    o4 = vt[8:12]
    for k in range(4):
        a(f"v_mul_f32 {o4[k]}, {wgt[0]}, {g[k]}")
    for s_ in range(1, 8):
        for k in range(4):
            a(f"v_fmac_f32 {o4[k]}, {wgt[s_]}, {g[4*s_+k]}")
    a(f"v_cvt_pk_bf16_f32 {o4[0]}, {o4[0]}, {o4[1]}")
    a(f"v_cvt_pk_bf16_f32 {o4[1]}, {o4[2]}, {o4[3]}")
    a(f"ds_write_b64 {vGl}, {o4[0:2]} offset:{8*QS}")
    a("s_waitcnt lgkmcnt(0)")
    a.label("L_join")
    a("s_barrier")
    stamp("B7")
    wf = vV[0:30]; ob = vV[32:62]
    for t in range(7):
        base = (L_O - L_Q) + 64*t if t < 4 else (L_H - L_Q) + 64*(t - 4)
        a(f"ds_read_b128 {ob[4*t:4*t+4]}, {vQr} offset:{base}")
        for hf in range(2):
            a(f"ds_read_b64_tr_b16 {wf[4*t+2*hf:4*t+2*hf+2]}, {vWr} offset:{t*8192 + hf*1024}")
    a(f"ds_read_b64 {ob[28:30]}, {vH2} offset:{(L_H - L_Q) + 192}")
    a(f"ds_read_b64_tr_b16 {wf[28:30]}, {vWr2} offset:{224*256}")
    fa, fb = acc[0:4], acc[4:8]
    a("s_waitcnt lgkmcnt(0)")
    for t in range(7):
        d = fa if t % 2 == 0 else fb
        c = "0" if t < 2 else str(d)
        a(f"v_mfma_f32_16x16x32_bf16 {d}, {wf[4*t:4*t+4]}, {ob[4*t:4*t+4]}, {c}")
    a(f"v_mfma_f32_16x16x16_bf16 {fb}, {wf[28:30]}, {ob[28:30]}, {fb}")
    for k in range(4):
        a(f"v_add_f32 {fa[k]}, {fa[k]}, {fb[k]}")
    for k in range(4):
        a(f"v_min_u32 {fa[k]}, -2, {fa[k]}")
    a(f"s_mov_b64 exec, {sHalf}")
    a(f"buffer_store_dwordx4 {fa}, {vFPp}, {sWS}, 0 offen {hs}")
    a("s_mov_b64 exec, -1")
    stamp("Fpub")
    a(f"s_cmp_lg_u32 {wv}, 0")
    a("s_cbranch_scc1 L_fin")
    a(f"s_lshl_b32 {st0}, s2, 12")
    a(f"s_add_u32 {st0}, {st0}, {FP}")
    r = vV[0:16]
    a(f"s_mov_b32 {sSpin}, 0")
    xs = vt[0:8]
    unpack(xs[0], xs[1], xo[0]); unpack(xs[2], xs[3], xo[1])
    unpack(xs[4], xs[5], b2o[0]); unpack(xs[6], xs[7], b2o[1])
    for k in range(4):
        a(f"v_add_f32 {xs[k]}, {xs[k]}, {xs[4+k]}")
    a.label("L_rpoll")
    for k in range(4):
        a(f"buffer_load_dwordx4 {r[4*k:4*k+4]}, {l16}, {sWS}, {st0} offen offset:{1024*k} sc1")
    a("s_waitcnt vmcnt(0)")
    maxu(t0, r, 16)
    a(f"v_cmp_eq_u32 vcc, -1, {t0}")
    a("s_cbranch_vccz L_rok")
    a(f"s_add_u32 {sSpin}, {sSpin}, 1")
    a(f"s_cmp_le_u32 {sSpin}, {SPIN_LIMIT}")
    a("s_cbranch_scc1 L_rpoll")
    a.label("L_rok")
    stamp("Rok")
    for k in range(0, 4, 2):
        a(f"v_pk_add_f32 {r[k:k+2]}, {r[k:k+2]}, {r[4+k:6+k]}")
        a(f"v_pk_add_f32 {r[8+k:10+k]}, {r[8+k:10+k]}, {r[12+k:14+k]}")
    for k in range(0, 4, 2):
        a(f"v_pk_add_f32 {r[k:k+2]}, {r[k:k+2]}, {r[8+k:10+k]}")
    for k in range(4):
        a(f"v_add_f32_dpp {r[k]}, {r[k]}, {r[k]} row_ror:8 row_mask:0xf bank_mask:0xf")
    for k in range(4):
        a(f"v_mov_b32 {r[4+k]}, {r[k]}")
    for k in range(4):
        a(f"v_permlane16_swap_b32 {r[k]}, {r[4+k]}")
    for k in range(4):
        a(f"v_add_f32 {r[k]}, {r[k]}, {r[4+k]}")
    for k in range(4):
        a(f"v_mov_b32 {r[4+k]}, {r[k]}")
    for k in range(4):
        a(f"v_permlane32_swap_b32 {r[k]}, {r[4+k]}")
    for k in range(4):
        a(f"v_add_f32 {r[k]}, {r[k]}, {r[4+k]}")
    for k in range(4):
        a(f"v_add_f32 {r[k]}, {r[k]}, {xs[k]}")
    a(f"v_cvt_pk_bf16_f32 {r[0]}, {r[0]}, {r[1]}")
    a(f"v_cvt_pk_bf16_f32 {r[1]}, {r[2]}, {r[3]}")
    a("s_mov_b64 exec, 0xff")
    a(f"buffer_store_dwordx2 {r[0:2]}, {vOut}, {sOUT}, 0 offen")
    a("s_mov_b64 exec, -1")
    a.label("L_fin")
    if stamps:
        a("s_waitcnt vmcnt(0)")
        stamp("end")
        a("s_waitcnt lgkmcnt(0)")
        a(f"s_lshl_b32 {st0}, s2, 3")
        a(f"s_add_u32 {st0}, {st0}, {wv}")
        a(f"s_lshl_b32 {st0}, {st0}, 6")
        a(f"s_add_u32 {st0}, {st0}, {ST}")
        a("s_mov_b64 exec, 1")
        for i, (nm, r_) in enumerate(stamp_regs):
            a(f"v_mov_b32 {t0}, {r_[0]}")
            a(f"buffer_store_dword {t0}, off, {sWS}, {st0} offset:{4*i}")
            a("s_nop 1")
        assert len(stamp_regs) <= 16
    a.label("L_end")
    a("s_endpgm")

    body = pad(a.lines)
    hdr = open("cdna_kernels/" + NAME + ".s.ref").read().split("; Override launch")[0]
    nv = (V.high + 7) // 8 * 8
    out = hdr + f"; @launch grid=(256,1,1) block=(512,1,1) lds={LDS_BYTES}\n"
    out += '.amdgcn_target "amdgcn-amd-amdhsa--gfx950"\n.text\n'
    out += f".globl {KNAME}\n.p2align 8\n.type {KNAME},@function\n"
    for ln in body:
        out += (ln if ln.endswith(":") else "    " + ln) + "\n"
    out += '.section .rodata,"a"\n.p2align 6\n'
    out += f".amdhsa_kernel {KNAME}\n"
    out += f"  .amdhsa_next_free_vgpr {nv}\n  .amdhsa_next_free_sgpr 102\n  .amdhsa_accum_offset {nv}\n"
    out += "  .amdhsa_group_segment_fixed_size 0\n  .amdhsa_kernarg_size 104\n  .amdhsa_user_sgpr_count 2\n"
    out += "  .amdhsa_user_sgpr_kernarg_segment_ptr 1\n  .amdhsa_system_sgpr_workgroup_id_x 1\n"
    out += "  .amdhsa_float_denorm_mode_32 3\n"
    out += ".end_amdhsa_kernel\n"
    return out, [n for n, _ in stamp_regs]

if __name__ == "__main__":
    kw = eval("dict(" + (sys.argv[2] if len(sys.argv) > 2 else "") + ")")
    txt, st = gen(**kw)
    open(sys.argv[1], "w").write(txt)
    print("stamps:", st)
```

```python
import sys
from asmlib import *

NAME = "parallel_sum__gqa_block_cached__dense_activation_squared_relu__decode"
KNAME = NAME + "_kernel"

QP, HP, ML, OP, FP, ST = 0x0, 0x40000, 0x80000, 0x100000, 0x200000, 0x400000
WS_SIZE = 0x800000
OOB = 0x10000000
L_K = 0
L_W = 0
L_OS = 0x10000
L_XN = 0x20000
XNS = 1024 + 16
L_S1 = L_XN + 8 * XNS
S1W = 2048 + 128
S1R = 272
L_Q = L_S1 + 8 * S1W
QS = 256 + 16
L_H = L_Q + 8 * QS
L_O = L_H + 8 * QS
L_ML = L_O + 8 * QS
LDS_BYTES = 163840
assert L_ML + 512 <= LDS_BYTES
LOG2E = 0x3fb8aa3b
SCALE = 0x3db504f3
SPIN_LIMIT = 200000

def gen(D=3, FL="nt", FSLOT=24, stamps=False, hs="sc1", probe=None):
    a = Asm()
    S = Alloc("s", 30, 102)
    V = Alloc("v", 1, 256)
    stamp_regs = []
    def stamp(name, waves=range(8)):
        if stamps or name == probe:
            r = S(2)
            stamp_regs.append(((name, list(waves)), r))
            a(f"s_memrealtime {r}")

    a.label(KNAME)
    stamp("start")
    a("s_cmp_ge_u32 s2, 256")
    a("s_cbranch_scc1 L_end")
    a("s_load_dwordx16 s[4:19], s[0:1], 0")
    a("s_load_dwordx8 s[20:27], s[0:1], 64")
    a("s_load_dwordx2 s[28:29], s[0:1], 96")
    sX, sK, sV, sS1, sWO, sW2, sB1, sB2, sOUT, sDBG, sWS = [S(4) for _ in range(11)]
    lane = V(); t0 = V(); t1 = V(); t2 = V(); t3 = V()
    wv = "s3"
    a(f"v_lshrrev_b32 {t0}, 6, v0")
    a(f"v_and_b32 {lane}, 63, v0")
    a(f"v_readfirstlane_b32 {wv}, {t0}")
    st0, st1, st2 = S(), S(), S()
    sStride, sS1off, sS1step, sKh = S(), S(), S(), S()
    sLdsW = S()
    a(f"s_and_b32 {sKh}, s2, 1")
    a(f"s_mov_b32 {sStride}, 7168")
    a("s_cmp_lt_u32 s2, 128")
    a(f"s_cselect_b32 {sStride}, 8192, {sStride}")
    a(f"s_and_b32 {st0}, s2, 127")
    a(f"s_lshr_b32 {st0}, {st0}, 1")
    a(f"s_lshl_b32 {st1}, {sKh}, 9")
    a(f"s_lshl_b32 {st2}, {wv}, 6")
    a(f"s_add_u32 {st1}, {st1}, {st2}")
    a(f"s_mul_i32 {st1}, {st1}, {sStride}")
    a(f"s_lshl_b32 {st2}, {st0}, 7")
    a(f"s_add_u32 {sS1off}, {st1}, {st2}")
    a(f"s_lshl_b32 {sS1step}, {sStride}, 3")
    a(f"s_lshl_b32 {sLdsW}, {wv}, 14")
    sPub = S()
    a("s_cmp_lt_u32 s2, 128")
    a(f"s_cselect_b32 {sPub}, {QP}, {HP}")
    a(f"s_lshl_b32 {st1}, {sStride}, 4")
    a(f"s_mul_i32 {st1}, {st1}, {sKh}")
    a(f"s_add_u32 {sPub}, {sPub}, {st1}")
    a(f"s_lshl_b32 {st1}, {st0}, 8")
    a(f"s_add_u32 {sPub}, {sPub}, {st1}")
    a("s_cmp_lt_u32 s2, 240")
    a(f"s_cselect_b32 {sPub}, {sPub}, {OOB}")
    l16 = V()
    a(f"v_lshlrev_b32 {l16}, 4, {lane}")
    vS1 = V(2)
    a(f"v_lshrrev_b32 {t0}, 3, {lane}")
    a(f"v_and_b32 {t1}, 7, {lane}")
    a(f"v_and_b32 {t2}, 2, {t0}")
    a(f"v_xor_b32 {t1}, {t1}, {t2}")
    a(f"v_lshlrev_b32 {t1}, 4, {t1}")
    a(f"v_mul_lo_u32 {t0}, {t0}, {sStride}")
    a(f"v_add_u32 {vS1[0]}, {t0}, {t1}")
    a(f"v_xor_b32 {t1}, 64, {t1}")
    a(f"v_add_u32 {vS1[1]}, {t0}, {t1}")
    sXa, sXb = S(), S()
    a(f"s_lshl_b32 {st1}, {wv}, 11")
    a(f"s_lshl_b32 {st2}, {sKh}, 10")
    a(f"s_add_u32 {sXa}, {st1}, {st2}")
    a(f"s_xor_b32 {sXb}, {sXa}, 1024")
    a("s_waitcnt lgkmcnt(0)")
    def srd(r, lo, size):
        a(f"s_mov_b32 {r[0]}, s{lo}")
        a(f"s_and_b32 {r[1]}, s{lo+1}, 0xffff")
        a(f"s_mov_b32 {r[2]}, {size}")
        a(f"s_mov_b32 {r[3]}, 0x20000")
    srd(sX, 4, 16384)
    xa, xb = V(4), V(4)
    a.vmem(f"buffer_load_dwordx4 {xa}, {l16}, {sX}, {sXa} offen", "xa")
    a.vmem(f"buffer_load_dwordx4 {xb}, {l16}, {sX}, {sXb} offen", "xb")
    a("s_cmp_lt_u32 s2, 128")
    a(f"s_cselect_b32 {sS1[0]}, s10, s16")
    a(f"s_cselect_b32 {sS1[1]}, s11, s17")
    a(f"s_and_b32 {sS1[1]}, {sS1[1]}, 0xffff")
    a(f"s_lshl_b32 {sS1[2]}, {sStride}, 10")
    a("s_cmp_lt_u32 s2, 240")
    a(f"s_cselect_b32 {sS1[2]}, {sS1[2]}, 0")
    a(f"s_mov_b32 {sS1[3]}, 0x20000")
    big = []
    for i in range(8):
        a(f"s_add_u32 m0, {sLdsW}, {8192 + 1024*i}")
        a.vmem(f"buffer_load_dwordx4 {vS1[i&1]}, {sS1}, {sS1off} offen {FL} lds", f"S{i}")
        big.append(f"S{i}")
        if i < 7:
            a(f"s_add_u32 {sS1off}, {sS1off}, {sS1step}")
    srd(sK, 6, 1 << 25); srd(sV, 8, 1 << 25); srd(sWO, 12, 1 << 23); srd(sW2, 20, 3584*2048)
    srd(sB1, 18, 7168); srd(sB2, 22, 2048); srd(sOUT, 24, 16384); srd(sDBG, 26, 256); srd(sWS, 28, WS_SIZE)
    S.give(4, 30); S.give(sS1)
    sB, sG, sSp, sHf, sN = S(), S(), S(), S(), S()
    a(f"s_lshr_b32 {sB}, s2, 5")
    a(f"s_lshr_b32 {sG}, s2, 3")
    a(f"s_and_b32 {sG}, {sG}, 3")
    a(f"s_and_b32 {sSp}, s2, 7")
    a(f"s_and_b32 {sHf}, s2, 31")
    a(f"s_lshr_b32 {sN}, s2, 5")
    vOPp = V(); vClr = V(); vMLp = V()
    tq = V()
    a(f"v_and_b32 {tq}, 255, v0")
    a(f"s_lshl_b32 {st0}, {sG}, 18")
    a(f"s_lshl_b32 {st1}, {sB}, 12")
    a(f"s_add_u32 {st0}, {st0}, {st1}")
    a(f"s_lshl_b32 {st1}, {sSp}, 9")
    a(f"s_add_u32 {st0}, {st0}, {st1}")
    a(f"s_add_u32 {st0}, {st0}, {OP}")
    a(f"v_lshrrev_b32 {t0}, 5, {tq}")
    a(f"v_lshlrev_b32 {t0}, 15, {t0}")
    a(f"v_and_b32 {t1}, 31, {tq}")
    a(f"v_lshl_add_u32 {t0}, {t1}, 4, {t0}")
    a(f"v_add_u32 {vOPp}, {st0}, {t0}")
    sFPb = S()
    a(f"s_lshl_b32 {sFPb}, {sN}, 17")
    a(f"s_lshl_b32 {st1}, {sHf}, 7")
    a(f"s_add_u32 {sFPb}, {sFPb}, {st1}")
    a(f"s_add_u32 {sFPb}, {sFPb}, {FP}")
    a(f"v_lshrrev_b32 {t0}, 3, {tq}")
    a(f"v_lshlrev_b32 {t0}, 12, {t0}")
    a(f"v_and_b32 {t1}, 7, {tq}")
    a(f"v_lshl_add_u32 {t0}, {t1}, 4, {t0}")
    a(f"v_add_u32 {t0}, {sFPb}, {t0}")
    a(f"v_cmp_gt_u32 vcc, 256, v0")
    a(f"v_cndmask_b32 {vClr}, {t0}, {vOPp}, vcc")
    a(f"s_lshl_b32 {st0}, {sG}, 12")
    a(f"s_lshl_b32 {st1}, {sB}, 6")
    a(f"s_add_u32 {st0}, {st0}, {st1}")
    a(f"s_lshl_b32 {st1}, {sSp}, 3")
    a(f"s_add_u32 {st0}, {st0}, {st1}")
    a(f"s_add_u32 {st0}, {st0}, {ML}")
    a(f"v_lshlrev_b32 {t0}, 9, v0")
    a(f"v_add_u32 {t0}, {st0}, {t0}")
    a(f"v_mov_b32 {t1}, {OOB}")
    a(f"v_cmp_gt_u32 vcc, 8, v0")
    a(f"v_cndmask_b32 {vMLp}, {t1}, {t0}, vcc")
    ones = V(4)
    for i in range(4):
        a(f"v_mov_b32 {ones[i]}, -1")
    a.vmem(f"buffer_store_dwordx4 {ones}, {vClr}, {sWS}, 0 offen {hs}", "clr0")
    a.vmem(f"buffer_store_dwordx2 {ones[0:2]}, {vMLp}, {sWS}, 0 offen {hs}", "clr1")
    vOut = V(); xo = V(2); b2o = V(2); b1o = V(2)
    a(f"s_lshr_b32 {st0}, {sHf}, 2")
    a(f"s_lshl_b32 {st0}, {st0}, 5")
    a(f"s_lshl_b32 {st1}, {sN}, 8")
    a(f"s_add_u32 {st0}, {st0}, {st1}")
    a(f"v_and_b32 {t0}, 3, {lane}")
    a(f"v_lshl_add_u32 {t0}, {t0}, 3, {st0}")
    a(f"s_and_b32 {st1}, {sHf}, 3")
    a(f"s_lshl_b32 {st1}, {st1}, 12")
    a(f"v_bfe_u32 {t1}, {lane}, 2, 1")
    a(f"v_lshl_add_u32 {t1}, {t1}, 11, {st1}")
    a(f"v_add_u32 {vOut}, {t0}, {t1}")
    a.vmem(f"buffer_load_dwordx2 {xo}, {vOut}, {sX}, 0 offen", "xo")
    a.vmem(f"buffer_load_dwordx2 {b2o}, {t0}, {sB2}, 0 offen", "b2o")
    vG0 = V(); vG1 = V(); vGl = V()
    a(f"s_lshl_b32 {st0}, {sB}, 14")
    a(f"s_lshl_b32 {st1}, {sG}, 12")
    a(f"s_add_u32 {st0}, {st0}, {st1}")
    a(f"v_lshl_add_u32 {t0}, {tq}, 4, {st0}")
    assert QP == 0
    a(f"s_mul_i32 {st0}, {sHf}, 448")
    a(f"s_add_u32 {st0}, {st0}, {HP}")
    a(f"v_lshrrev_b32 {t1}, 5, {tq}")
    a(f"v_mul_u32_u24 {t1}, 14336, {t1}")
    a(f"v_and_b32 {t2}, 31, {tq}")
    a(f"v_lshl_add_u32 {t1}, {t2}, 4, {t1}")
    a(f"v_add_u32 {t1}, {st0}, {t1}")
    a(f"v_mov_b32 {t3}, {OOB}")
    a(f"v_cmp_gt_u32 vcc, 28, {t2}")
    a(f"v_cndmask_b32 {t1}, {t3}, {t1}, vcc")
    a(f"s_mul_i32 {st0}, {sHf}, 224")
    a(f"v_lshl_add_u32 {t2}, {t2}, 3, {st0}")
    a(f"v_cndmask_b32 {t2}, {t3}, {t2}, vcc")
    a(f"v_cmp_gt_u32 vcc, 256, v0")
    a(f"v_cndmask_b32 {vG0}, {t1}, {t0}, vcc")
    a(f"v_cndmask_b32 {t2}, {t2}, {t3}, vcc")
    a.vmem(f"buffer_load_dwordx2 {b1o}, {t2}, {sB1}, 0 offen", "b1o")
    S.give(sX); S.give(sB1); S.give(sB2)
    a(f"v_mov_b32 {t0}, 114688")
    a(f"v_mov_b32 {t1}, 131072")
    a(f"v_cndmask_b32 {t0}, {t0}, {t1}, vcc")
    a(f"v_add_u32 {vG1}, {vG0}, {t0}")
    a(f"v_lshrrev_b32 {t0}, 5, v0")
    a(f"v_mul_u32_u24 {t0}, {QS}, {t0}")
    a(f"v_and_b32 {t1}, 31, v0")
    a(f"v_lshl_add_u32 {t0}, {t1}, 3, {t0}")
    a(f"v_add_u32 {vGl}, {L_Q}, {t0}")
    assert L_H == L_Q + 8 * QS and L_O == L_H + 8 * QS
    vK = V(4)
    a(f"v_lshrrev_b32 {t0}, 4, {lane}")
    a(f"v_and_b32 {t1}, 15, {lane}")
    a(f"v_lshlrev_b32 {t2}, 2, {t0}")
    a(f"v_xor_b32 {t1}, {t1}, {t2}")
    for p in range(4):
        a(f"v_xor_b32 {t2}, {p}, {t1}")
        a(f"v_lshlrev_b32 {t2}, 4, {t2}")
        a(f"v_lshl_add_u32 {vK[p]}, {t0}, 8, {t2}")
    sKV, sRot = S(), S()
    a(f"s_lshl_b32 {sKV}, s2, 17")
    a(f"s_add_u32 {sKV}, {sKV}, {sLdsW}")
    a(f"s_lshl_b32 {sRot}, {wv}, 1")
    a(f"s_lshr_b32 {st0}, s2, 3")
    a(f"s_add_u32 {sRot}, {sRot}, {st0}")
    vWo, vW2 = V(), V()
    a(f"v_and_b32 {t1}, 15, {lane}")
    a(f"v_lshlrev_b32 {t2}, 1, {t0}")
    a(f"v_xor_b32 {t1}, {t1}, {t2}")
    a(f"s_lshl_b32 {st0}, {wv}, 2")
    a(f"s_and_b32 {st0}, {st0}, 8")
    a(f"v_xor_b32 {t1}, {st0}, {t1}")
    a(f"v_lshlrev_b32 {t1}, 4, {t1}")
    a(f"v_lshl_add_u32 {vWo}, {t0}, 14, {t1}")
    a(f"v_lshl_add_u32 {vW2}, {t0}, 11, {t1}")
    sWo, sW2o = S(), S()
    a(f"s_and_b32 {st0}, {wv}, 3")
    a(f"s_lshl_b32 {st0}, {st0}, 5")
    a(f"s_lshr_b32 {st1}, {wv}, 2")
    a(f"s_add_u32 {st0}, {st0}, {st1}")
    a(f"s_lshl_b32 {st1}, {sHf}, 7")
    a(f"s_add_u32 {st0}, {st0}, {st1}")
    a(f"s_lshl_b32 {st0}, {st0}, 11")
    a(f"s_lshl_b32 {st1}, {sN}, 8")
    a(f"s_add_u32 {sWo}, {st0}, {st1}")
    a(f"s_mul_i32 {st0}, {sHf}, 112")
    a(f"s_lshl_b32 {st2}, {wv}, 2")
    a(f"s_add_u32 {st0}, {st0}, {st2}")
    a(f"s_lshl_b32 {st0}, {st0}, 11")
    a(f"s_add_u32 {sW2o}, {st0}, {st1}")

    vV = V(64)
    state = {"n": 8}
    def issue(count=1, paced=True):
        for _ in range(count):
            n = state["n"]
            if n >= 48: return
            if paced and n - D >= 0:
                a.wait_vm(big[n - D])
            if n < 40:
                p = (n - 8) & 15
                a(f"s_add_u32 {st0}, {sRot}, {p}")
                a(f"s_and_b32 {st0}, {st0}, 15")
                a(f"s_lshl_b32 {st0}, {st0}, 10")
                a(f"s_add_u32 {st0}, {st0}, {sKV}")
                if n < 24:
                    a(f"s_add_u32 m0, {sLdsW}, {1024*p}")
                    a.vmem(f"buffer_load_dwordx4 {vK[p&3]}, {sK}, {st0} offen {FL} lds", f"K{p}")
                    big.append(f"K{p}")
                else:
                    a.vmem(f"buffer_load_dwordx4 {vV[4*p:4*p+4]}, {l16}, {sV}, {st0} offen {FL}", f"V{p}")
                    big.append(f"V{p}")
            else:
                it = (n - 40) & 3
                a(f"s_lshl_b32 {st1}, {wv}, 10")
                if n < 44:
                    a(f"s_add_u32 {st0}, {sWo}, {it*2*2048}")
                    a(f"s_add_u32 m0, {st1}, {L_W + it*8192}")
                    a.vmem(f"buffer_load_dwordx4 {vWo}, {sWO}, {st0} offen {FL} lds", f"W{n-40}")
                else:
                    a(f"s_add_u32 {st0}, {sW2o}, {it*32*2048}")
                    if it == 3:
                        a(f"s_cmp_lt_u32 {wv}, 4")
                        a(f"s_cselect_b32 {st0}, {st0}, {OOB}")
                    a(f"s_add_u32 m0, {st1}, {L_W + 32768 + it*8192}")
                    a.vmem(f"buffer_load_dwordx4 {vW2}, {sW2}, {st0} offen {FL} lds", f"W{n-40}")
                big.append(f"W{n-40}")
            state["n"] = n + 1
    def issue_until(n):
        issue(n - state["n"])

    def allsum(r, tmp, op="add"):
        for k in (8, 4, 2, 1):
            a(f"v_{op}_f32_dpp {r}, {r}, {r} row_ror:{k} row_mask:0xf bank_mask:0xf")
        rowsum(r, tmp, op)
    def rowsum(r, tmp, op="add"):
        a(f"v_mov_b32 {tmp}, {r}")
        a(f"v_permlane16_swap_b32 {r}, {tmp}")
        a(f"v_{op}_f32 {r}, {r}, {tmp}")
        a(f"v_mov_b32 {tmp}, {r}")
        a(f"v_permlane32_swap_b32 {r}, {tmp}")
        a(f"v_{op}_f32 {r}, {r}, {tmp}")
    def unpack(dst_lo, dst_hi, src):
        a(f"v_and_b32 {dst_hi}, 0xffff0000, {src}")
        a(f"v_lshlrev_b32 {dst_lo}, 16, {src}")

    m0_ = V.mark()
    f = V(16)
    a.wait_vm("xb")
    stamp("x")
    for i in range(4):
        unpack(f[2*i], f[2*i+1], xa[i])
        unpack(f[8+2*i], f[8+2*i+1], xb[i])
    sa, sb = V(), V()
    a(f"v_add_f32 {sa}, {f[0]}, {f[1]}")
    a(f"v_add_f32 {sb}, {f[8]}, {f[9]}")
    for i in range(2, 8):
        a(f"v_add_f32 {sa}, {sa}, {f[i]}")
        a(f"v_add_f32 {sb}, {sb}, {f[8+i]}")
    a(f"v_add_f32 {sa}, {sa}, {sb}")
    allsum(sa, t0)
    mu = V()
    a(f"v_mul_f32 {mu}, 0x3a800000, {sa}")
    a(f"v_sub_f32 {t0}, {f[0]}, {mu}")
    a(f"v_sub_f32 {t1}, {f[8]}, {mu}")
    a(f"v_mul_f32 {sa}, {t0}, {t0}")
    a(f"v_mul_f32 {sb}, {t1}, {t1}")
    for i in range(1, 8):
        a(f"v_sub_f32 {t0}, {f[i]}, {mu}")
        a(f"v_sub_f32 {t1}, {f[8+i]}, {mu}")
        a(f"v_fmac_f32 {sa}, {t0}, {t0}")
        a(f"v_fmac_f32 {sb}, {t1}, {t1}")
    a(f"v_add_f32 {sa}, {sa}, {sb}")
    allsum(sa, t0)
    a(f"v_mul_f32 {sa}, 0x3a800000, {sa}")
    a(f"v_cvt_pk_bf16_f32 {t0}, {mu}, {sa}")
    unpack(mu, sa, t0)
    a(f"v_add_f32 {sa}, 0x3727c5ac, {sa}")
    a(f"v_cvt_pk_bf16_f32 {t0}, {sa}, {sa}")
    a(f"v_lshlrev_b32 {sa}, 16, {t0}")
    a(f"v_sqrt_f32 {sa}, {sa}")
    a(f"v_cvt_pk_bf16_f32 {t0}, {sa}, {sa}")
    a(f"v_lshlrev_b32 {sa}, 16, {t0}")
    a(f"v_rcp_f32 {sb}, {sa}")
    for i in range(4):
        a(f"v_sub_f32 {t0}, {f[2*i]}, {mu}")
        a(f"v_sub_f32 {t1}, {f[2*i+1]}, {mu}")
        a(f"v_cvt_pk_bf16_f32 {t0}, {t0}, {t1}")
        unpack(f[2*i], f[2*i+1], t0)
        for k in (2*i, 2*i+1):
            a(f"v_mul_f32 {t0}, {f[k]}, {sb}")
            a(f"v_fma_f32 {t1}, -{t0}, {sa}, {f[k]}")
            a(f"v_fma_f32 {f[k]}, {t1}, {sb}, {t0}")
        a(f"v_cvt_pk_bf16_f32 {xa[i]}, {f[2*i]}, {f[2*i+1]}")
    a(f"s_mul_i32 {st0}, {wv}, {XNS}")
    a(f"s_add_u32 {st0}, {st0}, {L_XN}")
    a(f"v_add_u32 {t0}, {st0}, {l16}")
    a(f"ds_write_b128 {t0}, {xa}")
    V.release(m0_)
    lj = V(); lb = V()
    a(f"v_lshrrev_b32 {lj}, 4, {lane}")
    a(f"v_and_b32 {lb}, 7, {lane}")
    m1_ = V.mark()
    vXn = V(); vTr = V(4)
    a(f"v_mul_u32_u24 {t0}, {XNS}, {lb}")
    a(f"v_lshl_add_u32 {t0}, {lj}, 4, {t0}")
    a(f"s_lshl_b32 {st0}, {wv}, 7")
    a(f"s_add_u32 {st0}, {st0}, {L_XN}")
    a(f"v_add_u32 {vXn}, {st0}, {t0}")
    a(f"v_bfe_u32 {t0}, {lane}, 2, 2")
    a(f"v_lshl_add_u32 {t1}, {lj}, 3, {t0}")
    a(f"v_lshlrev_b32 {t1}, 7, {t1}")
    a(f"v_and_b32 {t2}, 1, {lane}")
    a(f"v_lshl_add_u32 {t1}, {t2}, 3, {t1}")
    a(f"s_add_u32 {st0}, {sLdsW}, 8192")
    a(f"v_add_u32 {t1}, {st0}, {t1}")
    a(f"v_and_b32 {t0}, 2, {t0}")
    a(f"v_and_b32 {t2}, 1, {lj}")
    a(f"v_lshl_or_b32 {t0}, {t2}, 2, {t0}")
    a(f"v_bfe_u32 {t2}, {lane}, 1, 1")
    a(f"v_or_b32 {t0}, {t0}, {t2}")
    for ct in range(4):
        a(f"v_xor_b32 {t2}, {2*ct}, {t0}")
        a(f"v_lshl_add_u32 {vTr[ct]}, {t2}, 4, {t1}")
    a("s_waitcnt lgkmcnt(0)")
    a("s_barrier")
    stamp("B1")
    xnb = V(8)
    a(f"ds_read_b128 {xnb[0:4]}, {vXn}")
    a(f"ds_read_b128 {xnb[4:8]}, {vXn} offset:64")
    issue_until(8 + D)
    a.wait_vm("b1o")
    stamp("S1landed")
    wt = V(32); acc1 = V(16)
    for ct in range(4):
        for t in range(2):
            for hf in range(2):
                o = (ct*2 + t)*4 + hf*2
                a(f"ds_read_b64_tr_b16 {wt[o:o+2]}, {vTr[ct]} offset:{t*4096 + hf*512}")
    a("s_waitcnt lgkmcnt(0)")
    for t in range(2):
        for ct in range(4):
            o = (ct*2 + t)*4
            c = "0" if t == 0 else str(acc1[4*ct:4*ct+4])
            a(f"v_mfma_f32_16x16x32_bf16 {acc1[4*ct:4*ct+4]}, {wt[o:o+4]}, {xnb[4*t:4*t+4]}, {c}")
    sHalf = S(2)
    a(f"s_mov_b32 {sHalf[0]}, 0x00ff00ff")
    a(f"s_mov_b32 {sHalf[1]}, 0x00ff00ff")
    a(f"v_mul_u32_u24 {t0}, {S1R}, {lb}")
    a(f"v_lshl_add_u32 {t0}, {lj}, 4, {t0}")
    a(f"s_mul_i32 {st0}, {wv}, {S1W}")
    a(f"s_add_u32 {st0}, {st0}, {L_S1}")
    a(f"v_add_u32 {t0}, {st0}, {t0}")
    a(f"s_mov_b64 exec, {sHalf}")
    for ct in range(4):
        a(f"ds_write_b128 {t0}, {acc1[4*ct:4*ct+4]} offset:{64*ct}")
    a("s_mov_b64 exec, -1")
    a("s_waitcnt lgkmcnt(0)")
    a("s_barrier")
    a(f"s_cmp_lg_u32 {wv}, 0")
    a("s_cbranch_scc1 L_nopub1")
    a(f"v_mul_u32_u24 {t0}, {S1R}, {lj}")
    a(f"v_and_b32 {t1}, 15, {lane}")
    a(f"v_lshl_add_u32 {t0}, {t1}, 4, {t0}")
    a(f"v_add_u32 {t0}, {L_S1}, {t0}")
    a(f"s_lshl_b32 {st1}, {sStride}, 1")
    a(f"v_mul_lo_u32 {t2}, {lj}, {st1}")
    a(f"v_lshl_add_u32 {t2}, {t1}, 4, {t2}")
    a(f"s_lshl_b32 {st1}, {sStride}, 3")
    a(f"s_add_u32 {st1}, {st1}, {sPub}")
    for hb in range(2):
        for w_ in range(8):
            a(f"ds_read_b128 {wt[4*w_:4*w_+4]}, {t0} offset:{w_*S1W + hb*4*S1R}")
        a("s_waitcnt lgkmcnt(0)")
        d = acc1[4*hb:4*hb+4]
        for k in range(0, 4, 2):
            a(f"v_pk_add_f32 {d[k:k+2]}, {wt[k:k+2]}, {wt[4+k:6+k]}")
        for w_ in range(2, 8):
            for k in range(0, 4, 2):
                a(f"v_pk_add_f32 {d[k:k+2]}, {d[k:k+2]}, {wt[4*w_+k:4*w_+k+2]}")
        a(f"buffer_store_dwordx4 {d}, {t2}, {sWS}, {sPub if hb == 0 else st1} offen {hs}")
    a.label("L_nopub1")
    pubpos = len(a.vm)
    V.release(m1_)
    issue(D)
    a(f"s_cmp_lg_u32 {wv}, 0")
    a("s_cbranch_scc1 L_noflag")
    a(f"s_waitcnt vmcnt({len(a.vm) - pubpos})")
    a(f"s_and_b32 {st0}, s2, 3")
    a(f"s_lshl_b32 {st0}, {st0}, 3")
    a(f"s_lshl_b32 {st0}, 1, {st0}")
    a(f"v_mov_b32 {t0}, {st0}")
    a(f"s_and_b32 {st1}, s2, 0xfc")
    a("s_mov_b64 exec, 1")
    a(f"buffer_atomic_or {t0}, off, {sDBG}, {st1} sc1")
    a("s_mov_b64 exec, -1")
    stamp("flag", [0])
    a.label("L_noflag")
    issue_until(FSLOT)
    l4 = V(); fl = V()
    a(f"v_lshlrev_b32 {l4}, 2, {lane}")
    a.vmem(f"buffer_load_dword {fl}, {l4}, {sDBG}, 0 offen sc1", "F")
    issue(D)
    a.wait_vm("F")
    sSpin = S()
    a(f"s_mov_b32 {sSpin}, 0")
    a.label("L_fcheck")
    a(f"v_cmp_ne_u32 vcc, 0x01010101, {fl}")
    a("s_cbranch_vccz L_fok")
    a(f"s_add_u32 {sSpin}, {sSpin}, 1")
    a(f"s_cmp_gt_u32 {sSpin}, {SPIN_LIMIT}")
    a("s_cbranch_scc1 L_fok")
    a("s_sleep 4")
    a(f"buffer_load_dword {fl}, {l4}, {sDBG}, 0 offen sc1")
    a("s_waitcnt vmcnt(0)")
    a("s_branch L_fcheck")
    a.label("L_fok")
    stamp("fok")
    m2_ = V.mark()
    g0, g1 = V(4), V(4)
    a.vmem(f"buffer_load_dwordx4 {g0}, {vG0}, {sWS}, 0 offen sc1", "G0")
    a.vmem(f"buffer_load_dwordx4 {g1}, {vG1}, {sWS}, 0 offen sc1", "G1")
    issue(D)
    a.wait_vm("G1")
    a(f"v_pk_add_f32 {g0[0:2]}, {g0[0:2]}, {g1[0:2]}")
    a(f"v_pk_add_f32 {g0[2:4]}, {g0[2:4]}, {g1[2:4]}")
    a(f"v_cvt_pk_bf16_f32 {g1[0]}, {g0[0]}, {g0[1]}")
    a(f"v_cvt_pk_bf16_f32 {g1[1]}, {g0[2]}, {g0[3]}")
    a(f"s_cmp_lt_u32 {wv}, 4")
    a("s_cbranch_scc1 L_isq")
    for k in range(2):
        unpack(g0[0], g0[1], g1[k])
        unpack(g0[2], g0[3], b1o[k])
        a(f"v_add_f32 {g0[0]}, {g0[0]}, {g0[2]}")
        a(f"v_add_f32 {g0[1]}, {g0[1]}, {g0[3]}")
        a(f"v_cvt_pk_bf16_f32 {t0}, {g0[0]}, {g0[1]}")
        unpack(g0[0], g0[1], t0)
        a(f"v_max_f32 {g0[0]}, 0, {g0[0]}")
        a(f"v_max_f32 {g0[1]}, 0, {g0[1]}")
        a(f"v_mul_f32 {g0[0]}, {g0[0]}, {g0[0]}")
        a(f"v_mul_f32 {g0[1]}, {g0[1]}, {g0[1]}")
        a(f"v_cvt_pk_bf16_f32 {g1[k]}, {g0[0]}, {g0[1]}")
    a.label("L_isq")
    a(f"ds_write_b64 {vGl}, {g1[0:2]}")
    V.release(m2_)
    vQr = V()
    a(f"v_mul_u32_u24 {t0}, {QS}, {lb}")
    a(f"v_lshl_add_u32 {t0}, {lj}, 4, {t0}")
    a(f"v_add_u32 {vQr}, {L_Q}, {t0}")
    P = V(8)
    acc = V(32)
    m3_ = V.mark()
    vKr = V(4)
    a(f"v_and_b32 {t0}, 15, {lane}")
    a(f"v_and_b32 {t1}, 3, {lane}")
    a(f"v_lshlrev_b32 {t1}, 10, {t1}")
    a(f"v_bfe_u32 {t2}, {lane}, 2, 2")
    a(f"v_lshl_add_u32 {t1}, {t2}, 8, {t1}")
    a(f"v_add_u32 {t1}, {sLdsW}, {t1}")
    a(f"v_xor_b32 {t0}, {t0}, {lj}")
    for t in range(4):
        a(f"v_xor_b32 {t2}, {4*t}, {t0}")
        a(f"v_lshl_add_u32 {vKr[t]}, {t2}, 4, {t1}")
    a("s_waitcnt lgkmcnt(0)")
    a("s_barrier")
    stamp("B4")
    assert state["n"] - D >= 24, "K must have landed before QK"
    qb = V(16); kt = V(32); sc = V(16)
    for t in range(4):
        a(f"ds_read_b128 {qb[4*t:4*t+4]}, {vQr} offset:{64*t}")
    for half in range(2):
        for T2 in range(2):
            for t in range(4):
                o = (T2*4 + t)*4
                a(f"ds_read_b128 {kt[o:o+4]}, {vKr[t]} offset:{(half*2 + T2)*4096}")
        if half == 0:
            issue(1)
        a("s_waitcnt lgkmcnt(0)")
        for t in range(4):
            for T2 in range(2):
                T = half*2 + T2
                o = (T2*4 + t)*4
                c = "0" if t == 0 else str(sc[4*T:4*T+4])
                a(f"v_mfma_f32_16x16x32_bf16 {sc[4*T:4*T+4]}, {kt[o:o+4]}, {qb[4*t:4*t+4]}, {c}")
    for i in range(0, 16, 2):
        a(f"v_cvt_pk_bf16_f32 {t0}, {sc[i]}, {sc[i+1]}")
        unpack(sc[i], sc[i+1], t0)
        a(f"v_mul_f32 {sc[i]}, {hex(SCALE)}, {sc[i]}")
        a(f"v_mul_f32 {sc[i+1]}, {hex(SCALE)}, {sc[i+1]}")
        a(f"v_cvt_pk_bf16_f32 {t0}, {sc[i]}, {sc[i+1]}")
        unpack(sc[i], sc[i+1], t0)
    ml = V(2)
    mw, lw = ml[0], ml[1]
    a(f"v_max3_f32 {mw}, {sc[0]}, {sc[1]}, {sc[2]}")
    for i in range(3, 15, 2):
        a(f"v_max3_f32 {mw}, {mw}, {sc[i]}, {sc[i+1]}")
    a(f"v_max_f32 {mw}, {mw}, {sc[15]}")
    rowsum(mw, t0, "max")
    sL2E = S()
    a(f"s_mov_b32 {sL2E}, {hex(LOG2E)}")
    for i in range(16):
        a(f"v_sub_f32 {sc[i]}, {sc[i]}, {mw}")
        a(f"v_mul_f32 {sc[i]}, {sL2E}, {sc[i]}")
        a(f"v_exp_f32 {sc[i]}, {sc[i]}")
    a(f"v_add_f32 {lw}, {sc[0]}, {sc[1]}")
    for i in range(2, 16):
        a(f"v_add_f32 {lw}, {lw}, {sc[i]}")
    rowsum(lw, t0, "add")
    a(f"s_lshl_b32 {st0}, {wv}, 3")
    a(f"s_add_u32 {st0}, {st0}, {L_ML}")
    a(f"v_lshl_add_u32 {t0}, {lb}, 6, {st0}")
    a("s_mov_b64 exec, 0xff")
    a(f"ds_write_b64 {t0}, {ml}")
    a("s_mov_b64 exec, -1")
    issue(1)
    a(f"v_lshlrev_b32 {t0}, 6, {lb}")
    a("s_waitcnt lgkmcnt(0)")
    a("s_barrier")
    stamp("B5")
    a(f"v_add_u32 {t1}, {L_ML}, {t0}")
    for k in range(4):
        a(f"ds_read_b128 {kt[4*k:4*k+4]}, {t1} offset:{16*k}")
    a("s_waitcnt lgkmcnt(0)")
    def combine_ml(src, M, L, e):
        a(f"v_max3_f32 {M}, {src[0]}, {src[2]}, {src[4]}")
        a(f"v_max3_f32 {M}, {M}, {src[6]}, {src[8]}")
        a(f"v_max3_f32 {M}, {M}, {src[10]}, {src[12]}")
        a(f"v_max_f32 {M}, {M}, {src[14]}")
        for s_ in range(8):
            a(f"v_sub_f32 {e[s_]}, {src[2*s_]}, {M}")
            a(f"v_mul_f32 {e[s_]}, {sL2E}, {e[s_]}")
            a(f"v_exp_f32 {e[s_]}, {e[s_]}")
        a(f"v_mul_f32 {L}, {e[0]}, {src[1]}")
        for s_ in range(1, 8):
            a(f"v_fmac_f32 {L}, {e[s_]}, {src[2*s_+1]}")
    mlg = V(2)
    combine_ml(kt[0:16], mlg[0], mlg[1], kt[16:24])
    a(f"v_sub_f32 {t0}, {mw}, {mlg[0]}")
    a(f"v_mul_f32 {t0}, {sL2E}, {t0}")
    a(f"v_exp_f32 {t0}, {t0}")
    a(f"v_min_u32 {mlg[0]}, -2, {mlg[0]}")
    a(f"v_min_u32 {mlg[1]}, -2, {mlg[1]}")
    a.vmem(f"buffer_store_dwordx2 {mlg}, {vMLp}, {sWS}, 0 offen {hs}", "mlpub")
    for i in range(16):
        a(f"v_mul_f32 {sc[i]}, {t0}, {sc[i]}")
    for i in range(8):
        a(f"v_cvt_pk_bf16_f32 {P[i]}, {sc[2*i]}, {sc[2*i+1]}")
    V.release(m3_)
    vt = V(32)
    sPlo, sPhi = S(), S()
    a(f"s_mov_b32 {sPlo}, 0x05040100")
    a(f"s_mov_b32 {sPhi}, 0x07060302")
    def perm_pair(G, ip):
        x0 = vV[4*(8*G + 2*ip):4*(8*G + 2*ip) + 4]
        x1 = vV[4*(8*G + 2*ip + 1):4*(8*G + 2*ip + 1) + 4]
        for e in range(8):
            a(f"v_perm_b32 {vt[4*e + ip]}, {x1[e>>1]}, {x0[e>>1]}, {sPhi if e & 1 else sPlo}")
    def pv(G):
        for e in range(8):
            c = "0" if G == 0 else str(acc[4*e:4*e+4])
            a(f"v_mfma_f32_16x16x32_bf16 {acc[4*e:4*e+4]}, {vt[4*e:4*e+4]}, {P[4*G:4*G+4]}, {c}")
    issue_until(max(state["n"], 32 + D))
    a.wait_vm("V7")
    for ip in range(4):
        perm_pair(0, ip)
    pv(0)
    issue_until(40)
    mlr = V(16)
    vMLg = V(); vOPg = V()
    a(f"v_lshrrev_b32 {t0}, 5, {tq}")
    a(f"s_lshl_b32 {st0}, {sHf}, 9")
    a(f"s_add_u32 {st0}, {st0}, {ML}")
    a(f"v_lshl_add_u32 {vMLg}, {t0}, 6, {st0}")
    a(f"s_lshl_b32 {st0}, {sHf}, 15")
    a(f"s_add_u32 {st0}, {st0}, {OP}")
    a(f"v_lshl_add_u32 {t0}, {t0}, 12, {st0}")
    a(f"v_and_b32 {t1}, 31, {tq}")
    a(f"v_lshl_add_u32 {vOPg}, {t1}, 4, {t0}")
    a(f"s_cmp_lt_u32 {wv}, 4")
    a("s_cbranch_scc1 L_noml")
    for k in range(4):
        a(f"buffer_load_dwordx4 {mlr[4*k:4*k+4]}, {vMLg}, {sWS}, 0 offen offset:{16*k} sc1")
    a.label("L_noml")
    issue(D - 1)
    a.wait_vm("V13")
    for ip in range(3):
        perm_pair(1, ip)
    issue(48, paced=False)
    vOw = V()
    a(f"v_mul_u32_u24 {t0}, 144, {lj}")
    a(f"v_lshl_add_u32 {t0}, {lb}, 4, {t0}")
    a(f"s_mul_i32 {st0}, {wv}, 4608")
    a(f"s_add_u32 {st0}, {st0}, {L_OS}")
    a(f"v_add_u32 {vOw}, {st0}, {t0}")
    vOr = V()
    a(f"v_and_b32 {t0}, 31, {tq}")
    a(f"v_mul_u32_u24 {t0}, 144, {t0}")
    a(f"v_lshrrev_b32 {t1}, 5, {tq}")
    a(f"v_lshl_add_u32 {t0}, {t1}, 4, {t0}")
    a(f"v_add_u32 {vOr}, {L_OS}, {t0}")
    vWr = V(); vWr2 = V(); vFPp = V()
    a(f"v_bfe_u32 {t0}, {lane}, 2, 2")
    a(f"v_and_b32 {t2}, 1, {lane}")
    a(f"v_lshlrev_b32 {t2}, 3, {t2}")
    a(f"v_bfe_u32 {t3}, {lane}, 1, 1")
    a(f"s_lshl_b32 {st0}, {wv}, 1")
    a(f"v_or_b32 {t3}, {st0}, {t3}")
    a(f"v_lshlrev_b32 {t1}, 1, {t0}")
    a(f"v_xor_b32 {t3}, {t3}, {t1}")
    a(f"v_lshl_add_u32 {t1}, {lj}, 3, {t0}")
    a(f"v_lshl_add_u32 {t1}, {t1}, 8, {t2}")
    a(f"v_and_b32 {vWr}, 1, {lj}")
    a(f"v_lshlrev_b32 {vWr}, 3, {vWr}")
    a(f"v_xor_b32 {vWr}, {vWr}, {t3}")
    a(f"v_lshl_add_u32 {vWr}, {vWr}, 4, {t1}")
    a(f"v_lshl_add_u32 {t1}, {lj}, 2, {t0}")
    a(f"v_lshl_add_u32 {t1}, {t1}, 8, {t2}")
    a(f"v_lshrrev_b32 {vWr2}, 1, {lj}")
    a(f"v_lshlrev_b32 {vWr2}, 3, {vWr2}")
    a(f"v_xor_b32 {vWr2}, {vWr2}, {t3}")
    a(f"v_lshl_add_u32 {vWr2}, {vWr2}, 4, {t1}")
    assert L_W == 0
    a(f"v_lshrrev_b32 {t0}, 1, {lb}")
    a(f"v_lshlrev_b32 {t0}, 12, {t0}")
    a(f"v_and_b32 {t1}, 1, {lb}")
    a(f"v_lshl_add_u32 {t0}, {t1}, 6, {t0}")
    a(f"v_lshl_add_u32 {t0}, {lj}, 4, {t0}")
    a(f"s_lshl_b32 {st0}, {wv}, 14")
    a(f"s_add_u32 {st0}, {st0}, {sFPb}")
    a(f"v_add_u32 {vFPp}, {st0}, {t0}")
    vH2 = V()
    a(f"v_lshlrev_b32 {t0}, 3, {lj}")
    a(f"v_sub_u32 {vH2}, {vQr}, {t0}")
    a.wait_vm("V15")
    stamp("Vlanded")
    perm_pair(1, 3)
    pv(1)
    a(f"s_mov_b64 exec, {sHalf}")
    for e in range(8):
        a(f"ds_write_b128 {vOw}, {acc[4*e:4*e+4]} offset:{576*e}")
    a("s_mov_b64 exec, -1")
    a("s_waitcnt lgkmcnt(0)")
    a("s_barrier")
    g = vV[0:32]
    a(f"s_cmp_ge_u32 {wv}, 4")
    a("s_cbranch_scc1 L_gather")
    for w_ in range(8):
        a(f"ds_read_b128 {g[4*w_:4*w_+4]}, {vOr} offset:{4608*w_}")
    for w_ in range(1, 8):
        if w_ in (1, 4):
            a(f"s_waitcnt lgkmcnt({4 if w_ == 1 else 0})")
        for k in range(0, 4, 2):
            a(f"v_pk_add_f32 {g[k:k+2]}, {g[k:k+2]}, {g[4*w_+k:4*w_+k+2]}")
    for k in range(4):
        a(f"v_min_u32 {g[k]}, -2, {g[k]}")
    a(f"buffer_store_dwordx4 {g[0:4]}, {vOPp}, {sWS}, 0 offen {hs}")
    stamp("Opub", range(4))
    a("s_waitcnt vmcnt(1)")
    a("s_branch L_join")
    a.label("L_gather")
    def op_loads():
        for s_ in range(8):
            a(f"buffer_load_dwordx4 {g[4*s_:4*s_+4]}, {vOPg}, {sWS}, 0 offen offset:{512*s_} sc1")
    def maxu(dst, src, n):
        a(f"v_max3_u32 {dst}, {src[0]}, {src[1]}, {src[2]}")
        i = 3
        while i + 1 < n:
            a(f"v_max3_u32 {dst}, {dst}, {src[i]}, {src[i+1]}")
            i += 2
        if i < n:
            a(f"v_max_u32 {dst}, {dst}, {src[i]}")
    op_loads()
    a(f"s_waitcnt vmcnt(16)")
    a(f"s_mov_b32 {sSpin}, 0")
    a.label("L_mlcheck")
    maxu(t0, mlr, 16)
    a(f"v_cmp_eq_u32 vcc, -1, {t0}")
    a("s_cbranch_vccz L_mlok")
    a(f"s_add_u32 {sSpin}, {sSpin}, 1")
    a(f"s_cmp_gt_u32 {sSpin}, {SPIN_LIMIT}")
    a("s_cbranch_scc1 L_mlok")
    for k in range(4):
        a(f"buffer_load_dwordx4 {mlr[4*k:4*k+4]}, {vMLg}, {sWS}, 0 offen offset:{16*k} sc1")
    a("s_waitcnt vmcnt(0)")
    a("s_branch L_mlcheck")
    a.label("L_mlok")
    wgt = vt[0:8]
    combine_ml(mlr, t1, t2, wgt)
    a(f"v_rcp_f32 {t2}, {t2}")
    for s_ in range(8):
        a(f"v_mul_f32 {wgt[s_]}, {wgt[s_]}, {t2}")
    a(f"s_mov_b32 {sSpin}, 0")
    a.label("L_ocheck")
    a("s_waitcnt vmcnt(0)")
    maxu(t0, g, 32)
    a(f"v_cmp_eq_u32 vcc, -1, {t0}")
    a("s_cbranch_vccz L_ook")
    a(f"s_add_u32 {sSpin}, {sSpin}, 1")
    a(f"s_cmp_gt_u32 {sSpin}, {SPIN_LIMIT}")
    a("s_cbranch_scc1 L_ook")
    op_loads()
    a("s_branch L_ocheck")
    a.label("L_ook")
    stamp("Ook", range(4, 8))
    o4 = vt[8:12]
    for k in range(4):
        a(f"v_mul_f32 {o4[k]}, {wgt[0]}, {g[k]}")
    for s_ in range(1, 8):
        for k in range(4):
            a(f"v_fmac_f32 {o4[k]}, {wgt[s_]}, {g[4*s_+k]}")
    a(f"v_cvt_pk_bf16_f32 {o4[0]}, {o4[0]}, {o4[1]}")
    a(f"v_cvt_pk_bf16_f32 {o4[1]}, {o4[2]}, {o4[3]}")
    a(f"ds_write_b64 {vGl}, {o4[0:2]} offset:{8*QS}")
    a("s_waitcnt lgkmcnt(0)")
    a.label("L_join")
    a("s_barrier")
    stamp("B7")
    wf = vV[0:30]; ob = vV[32:62]
    for t in range(7):
        base = (L_O - L_Q) + 64*t if t < 4 else (L_H - L_Q) + 64*(t - 4)
        a(f"ds_read_b128 {ob[4*t:4*t+4]}, {vQr} offset:{base}")
        for hf in range(2):
            a(f"ds_read_b64_tr_b16 {wf[4*t+2*hf:4*t+2*hf+2]}, {vWr} offset:{t*8192 + hf*1024}")
    a(f"ds_read_b64 {ob[28:30]}, {vH2} offset:{(L_H - L_Q) + 192}")
    a(f"ds_read_b64_tr_b16 {wf[28:30]}, {vWr2} offset:{224*256}")
    fa, fb = acc[0:4], acc[4:8]
    a("s_waitcnt lgkmcnt(0)")
    for t in range(7):
        d = fa if t % 2 == 0 else fb
        c = "0" if t < 2 else str(d)
        a(f"v_mfma_f32_16x16x32_bf16 {d}, {wf[4*t:4*t+4]}, {ob[4*t:4*t+4]}, {c}")
    a(f"v_mfma_f32_16x16x16_bf16 {fb}, {wf[28:30]}, {ob[28:30]}, {fb}")
    for k in range(4):
        a(f"v_add_f32 {fa[k]}, {fa[k]}, {fb[k]}")
    for k in range(4):
        a(f"v_min_u32 {fa[k]}, -2, {fa[k]}")
    a(f"s_mov_b64 exec, {sHalf}")
    a(f"buffer_store_dwordx4 {fa}, {vFPp}, {sWS}, 0 offen {hs}")
    a("s_mov_b64 exec, -1")
    stamp("Fpub")
    a(f"s_cmp_lg_u32 {wv}, 0")
    a("s_cbranch_scc1 L_fin")
    a(f"s_lshl_b32 {st0}, s2, 12")
    a(f"s_add_u32 {st0}, {st0}, {FP}")
    r = vV[0:16]
    a(f"s_mov_b32 {sSpin}, 0")
    xs = vt[0:8]
    unpack(xs[0], xs[1], xo[0]); unpack(xs[2], xs[3], xo[1])
    unpack(xs[4], xs[5], b2o[0]); unpack(xs[6], xs[7], b2o[1])
    for k in range(4):
        a(f"v_add_f32 {xs[k]}, {xs[k]}, {xs[4+k]}")
    a.label("L_rpoll")
    for k in range(4):
        a(f"buffer_load_dwordx4 {r[4*k:4*k+4]}, {l16}, {sWS}, {st0} offen offset:{1024*k} sc1")
    a("s_waitcnt vmcnt(0)")
    maxu(t0, r, 16)
    a(f"v_cmp_eq_u32 vcc, -1, {t0}")
    a("s_cbranch_vccz L_rok")
    a(f"s_add_u32 {sSpin}, {sSpin}, 1")
    a(f"s_cmp_le_u32 {sSpin}, {SPIN_LIMIT}")
    a("s_cbranch_scc1 L_rpoll")
    a.label("L_rok")
    stamp("Rok", [0])
    for k in range(0, 4, 2):
        a(f"v_pk_add_f32 {r[k:k+2]}, {r[k:k+2]}, {r[4+k:6+k]}")
        a(f"v_pk_add_f32 {r[8+k:10+k]}, {r[8+k:10+k]}, {r[12+k:14+k]}")
    for k in range(0, 4, 2):
        a(f"v_pk_add_f32 {r[k:k+2]}, {r[k:k+2]}, {r[8+k:10+k]}")
    for k in range(4):
        a(f"v_add_f32_dpp {r[k]}, {r[k]}, {r[k]} row_ror:8 row_mask:0xf bank_mask:0xf")
    for k in range(4):
        a(f"v_mov_b32 {r[4+k]}, {r[k]}")
    for k in range(4):
        a(f"v_permlane16_swap_b32 {r[k]}, {r[4+k]}")
    for k in range(4):
        a(f"v_add_f32 {r[k]}, {r[k]}, {r[4+k]}")
    for k in range(4):
        a(f"v_mov_b32 {r[4+k]}, {r[k]}")
    for k in range(4):
        a(f"v_permlane32_swap_b32 {r[k]}, {r[4+k]}")
    for k in range(4):
        a(f"v_add_f32 {r[k]}, {r[k]}, {r[4+k]}")
    for k in range(4):
        a(f"v_add_f32 {r[k]}, {r[k]}, {xs[k]}")
    a(f"v_cvt_pk_bf16_f32 {r[0]}, {r[0]}, {r[1]}")
    a(f"v_cvt_pk_bf16_f32 {r[1]}, {r[2]}, {r[3]}")
    a("s_mov_b64 exec, 0xff")
    a(f"buffer_store_dwordx2 {r[0:2]}, {vOut}, {sOUT}, 0 offen")
    a("s_mov_b64 exec, -1")
    a.label("L_fin")
    if probe:
        a("s_waitcnt vmcnt(0)")
        stamp("end")
        a("s_waitcnt lgkmcnt(0)")
        pr = stamp_regs[0][1]
        now = S(2)
        a(f"s_mov_b32 {sSpin}, 0")
        a.label("L_hold")
        a(f"s_memrealtime {now}")
        a("s_waitcnt lgkmcnt(0)")
        a(f"s_sub_u32 {st0}, {now[0]}, {pr[0]}")
        a(f"s_add_u32 {sSpin}, {sSpin}, 1")
        a(f"s_cmp_gt_u32 {sSpin}, 100000")
        a("s_cbranch_scc1 L_end")
        a(f"s_cmp_lt_u32 {st0}, 4000")
        a("s_cbranch_scc1 L_hold")
    if stamps:
        a("s_waitcnt vmcnt(0)")
        stamp("end")
        a("s_waitcnt lgkmcnt(0)")
        a(f"s_lshl_b32 {st0}, s2, 3")
        a(f"s_add_u32 {st0}, {st0}, {wv}")
        a(f"s_lshl_b32 {st0}, {st0}, 6")
        a(f"s_add_u32 {st0}, {st0}, {ST}")
        a("s_mov_b64 exec, 1")
        for i, (nm, r_) in enumerate(stamp_regs):
            a(f"v_mov_b32 {t0}, {r_[0]}")
            a(f"buffer_store_dword {t0}, off, {sWS}, {st0} offset:{4*i}")
            a("s_nop 1")
        assert len(stamp_regs) <= 16
    a.label("L_end")
    a("s_endpgm")

    body = pad(a.lines)
    hdr = open("cdna_kernels/" + NAME + ".s.ref").read().split("; Override launch")[0]
    nv = (V.high + 7) // 8 * 8
    out = hdr + f"; @launch grid=(256,1,1) block=(512,1,1) lds={LDS_BYTES}\n"
    out += '.amdgcn_target "amdgcn-amd-amdhsa--gfx950"\n.text\n'
    out += f".globl {KNAME}\n.p2align 8\n.type {KNAME},@function\n"
    for ln in body:
        out += (ln if ln.endswith(":") else "    " + ln) + "\n"
    out += '.section .rodata,"a"\n.p2align 6\n'
    out += f".amdhsa_kernel {KNAME}\n"
    out += f"  .amdhsa_next_free_vgpr {nv}\n  .amdhsa_next_free_sgpr 102\n  .amdhsa_accum_offset {nv}\n"
    out += "  .amdhsa_group_segment_fixed_size 0\n  .amdhsa_kernarg_size 104\n  .amdhsa_user_sgpr_count 2\n"
    out += "  .amdhsa_user_sgpr_kernarg_segment_ptr 1\n  .amdhsa_system_sgpr_workgroup_id_x 1\n"
    out += "  .amdhsa_float_denorm_mode_32 3\n"
    out += ".end_amdhsa_kernel\n"
    return out, [n for n, _ in stamp_regs]

if __name__ == "__main__":
    kw = eval("dict(" + (sys.argv[2] if len(sys.argv) > 2 else "") + ")")
    txt, st = gen(**kw)
    open(sys.argv[1], "w").write(txt)
    import json
    json.dump(st, open(sys.argv[1] + ".json", "w"))
```

```python
import sys, copy
from asmlib import *

NAME = "parallel_sum__gqa_block_cached__dense_activation_squared_relu__decode"
KNAME = NAME + "_kernel"

QP, HP, ML, OP, FP, ST = 0x0, 0x40000, 0x80000, 0x100000, 0x200000, 0x400000
EPO = 0x90000
WS_SIZE = 0x800000
OOB = 0x10000000
L_W = 0
L_OS = 0x10000
L_XN = 0x20000
XNS = 1024 + 16
S1R = 272
S1W = 8 * S1R
L_S1 = L_XN + 8 * XNS
QS = 256 + 16
L_Q = L_S1 + 4 * S1W
L_H = L_Q + 8 * QS
L_O = L_H + 8 * QS
L_ML = L_O + 8 * QS
L_F = L_ML + 256
L_P = L_F + 128
LDS_BYTES = 163840
assert L_P + 8192 <= LDS_BYTES
LOG2E = 0x3fb8aa3b
SCALE = 0x3db504f3
SPIN_LIMIT = 100000

def gen(D=6, FL="nt", stamps=False, probe=None, N2=3, GS=40, N5=9, KVM=0, DW=None, TW=2, STREAM=False, PRIO=0,
        GSLEEP=8, DV=None, NV=80):
    hs = "sc1"
    stamp_names = []
    class Path:
        pass
    def mkpath(parent=None):
        p = Path()
        p.a = Asm()
        p.S = copy.deepcopy(parent.S) if parent else Alloc("s", 30, 102)
        p.V = copy.deepcopy(parent.V) if parent else Alloc("v", 1, 256)
        p.stamps = list(parent.stamps) if parent else []
        return p
    def stamp(p, name, waves):
        if stamps or name == probe:
            names = [n for n, _ in stamp_names]
            if name in names:
                i = names.index(name)
                stamp_names[i] = (name, sorted(set(stamp_names[i][1]) | set(waves)))
            else:
                i = len(stamp_names); stamp_names.append((name, list(waves)))
            r = p.S(2)
            p.stamps.append((i, r))
            p.a(f"s_memrealtime {r}")
    def count(p, name, waves):
        if stamps:
            i = len(stamp_names); stamp_names.append(("#" + name, list(waves)))
            r = p.S(1)
            p.stamps.append((i, r))
            p.a(f"s_mov_b32 {r}, {sSpin}")
    LW, CW, AW = range(4), range(4, 8), range(8)

    P0 = mkpath()
    a, S, V = P0.a, P0.S, P0.V
    a.label(KNAME)
    stamp(P0, "start", AW)
    a("s_cmp_ge_u32 s2, 256")
    a("s_cbranch_scc1 L_end")
    a("s_load_dwordx16 s[4:19], s[0:1], 0")
    a("s_load_dwordx8 s[20:27], s[0:1], 64")
    a("s_load_dwordx2 s[28:29], s[0:1], 96")
    lane = V(); t0 = V(); t1 = V(); t2 = V(); t3 = V(); l16 = V(); lj = V(); lb = V(); vFF = V()
    wv = "s3"
    st0, st1, st2 = S(), S(), S()
    sWS = S(4); sT = S(4); sE = S(); sHalf = S(2); sHf = S(); sN = S(); sStride = S(); sKh = S(); sCb = S(); sSpin = S()
    a(f"v_lshrrev_b32 {t0}, 6, v0")
    a(f"v_and_b32 {lane}, 63, v0")
    a(f"v_readfirstlane_b32 {wv}, {t0}")
    a(f"s_and_b32 {sKh}, s2, 1")
    a(f"s_mov_b32 {sStride}, 7168")
    a("s_cmp_lt_u32 s2, 128")
    a(f"s_cselect_b32 {sStride}, 8192, {sStride}")
    a(f"s_bfe_u32 {sCb}, s2, 0x60001")
    a(f"v_lshlrev_b32 {l16}, 4, {lane}")
    a(f"s_cmp_ge_u32 {wv}, 4")
    a("s_cbranch_scc1 L_compute")

    def srd(a, r, lo, size):
        a(f"s_mov_b32 {r[0]}, s{lo}")
        a(f"s_and_b32 {r[1]}, s{lo+1}, 0xffff")
        a(f"s_mov_b32 {r[2]}, {size}")
        a(f"s_mov_b32 {r[3]}, 0x20000")
    def common_consts(a):
        a(f"s_and_b32 {sHf}, s2, 31")
        a(f"s_lshr_b32 {sN}, s2, 5")
        a(f"s_mov_b32 {sHalf[0]}, 0x00ff00ff")
        a(f"s_mov_b32 {sHalf[1]}, 0x00ff00ff")
        a(f"v_lshrrev_b32 {lj}, 4, {lane}")
        a(f"v_and_b32 {lb}, 7, {lane}")
        a(f"v_mov_b32 {vFF}, 0xff")
    def make_tags(a):
        a(f"s_add_u32 {sE}, {sE}, 0xd1a7653b")
        for k in range(4):
            a(f"s_bfe_u32 {sT[k]}, {sE}, {hex(0x80000 + 8*k)}")
    def tag(a, r):
        for k in range(r.n):
            a(f"v_bfi_b32 {r[k]}, {vFF}, {sT[k & 3]}, {r[k]}")
    def orall(a, acc, x):
        n = x.n
        a(f"v_or3_b32 {acc}, {x[0]}, {x[1]}, {x[2]}")
        i = 3
        while i + 1 < n:
            a(f"v_or3_b32 {acc}, {acc}, {x[i]}, {x[i+1]}")
            i += 2
        if i < n:
            a(f"v_or_b32 {acc}, {acc}, {x[i]}")
        a(f"v_and_b32 {acc}, {vFF}, {acc}")
    def poll(a, name, loads, dst, src, sleep=0):
        a(f"s_mov_b32 {sSpin}, 0")
        a.label(f"L_{name}_chk")
        a("s_waitcnt vmcnt(0)")
        for k in range(src.n):
            a(f"v_xor_b32 {dst[k]}, {sT[k & 3]}, {src[k]}")
        orall(a, t0, dst)
        a(f"v_cmp_ne_u32 vcc, 0, {t0}")
        a(f"s_cbranch_vccz L_{name}_ok")
        a(f"s_add_u32 {sSpin}, {sSpin}, 1")
        a(f"s_cmp_gt_u32 {sSpin}, {SPIN_LIMIT}")
        a(f"s_cbranch_scc1 L_{name}_ok")
        if sleep:
            a(f"s_sleep {sleep}")
        for i, ld in enumerate(loads):
            orall(a, t0, dst[4*i:4*i+4])
            a(f"v_cmp_ne_u32 vcc, 0, {t0}")
            a(f"s_cbranch_vccz L_{name}_s{i}")
            a("s_mov_b64 exec, vcc")
            a(ld)
            a("s_mov_b64 exec, -1")
            a.label(f"L_{name}_s{i}")
        a(f"s_branch L_{name}_chk")
        a.label(f"L_{name}_ok")
    def swap16(a, r, tmp, op):
        a(f"v_mov_b32 {tmp}, {r}")
        a(f"v_permlane16_swap_b32 {r}, {tmp}")
        a(f"v_{op}_f32 {r}, {r}, {tmp}")
    def swap32(a, r, tmp, op):
        a(f"v_mov_b32 {tmp}, {r}")
        a(f"v_permlane32_swap_b32 {r}, {tmp}")
        a(f"v_{op}_f32 {r}, {r}, {tmp}")
    def ror(a, r, k, op):
        a(f"v_{op}_f32_dpp {r}, {r}, {r} row_ror:{k} row_mask:0xf bank_mask:0xf")
    def unpack(a, dst_lo, dst_hi, src):
        a(f"v_and_b32 {dst_hi}, 0xffff0000, {src}")
        a(f"v_lshlrev_b32 {dst_lo}, 16, {src}")
    def final_addrs(p):
        a, V, S = p.a, p.V, p.S
        p.vQr = V(); p.vWr = V(); p.vWr2 = V(); p.vFPp = V(); p.vH2 = V()
        a(f"v_mul_u32_u24 {t0}, {QS}, {lb}")
        a(f"v_lshl_add_u32 {t0}, {lj}, 4, {t0}")
        a(f"v_add_u32 {p.vQr}, {L_Q}, {t0}")
        a(f"v_lshlrev_b32 {t0}, 3, {lj}")
        a(f"v_sub_u32 {p.vH2}, {p.vQr}, {t0}")
        a(f"v_bfe_u32 {t0}, {lane}, 2, 2")
        a(f"v_and_b32 {t2}, 1, {lane}")
        a(f"v_lshlrev_b32 {t2}, 3, {t2}")
        a(f"v_bfe_u32 {t3}, {lane}, 1, 1")
        a(f"s_lshl_b32 {st0}, {wv}, 1")
        a(f"v_or_b32 {t3}, {st0}, {t3}")
        a(f"v_lshlrev_b32 {t1}, 1, {t0}")
        a(f"v_xor_b32 {t3}, {t3}, {t1}")
        a(f"v_lshl_add_u32 {t1}, {lj}, 3, {t0}")
        a(f"v_lshl_add_u32 {t1}, {t1}, 8, {t2}")
        a(f"v_and_b32 {p.vWr}, 1, {lj}")
        a(f"v_lshlrev_b32 {p.vWr}, 3, {p.vWr}")
        a(f"v_xor_b32 {p.vWr}, {p.vWr}, {t3}")
        a(f"v_lshl_add_u32 {p.vWr}, {p.vWr}, 4, {t1}")
        a(f"v_lshl_add_u32 {t1}, {lj}, 2, {t0}")
        a(f"v_lshl_add_u32 {t1}, {t1}, 8, {t2}")
        a(f"v_lshrrev_b32 {p.vWr2}, 1, {lj}")
        a(f"v_lshlrev_b32 {p.vWr2}, 3, {p.vWr2}")
        a(f"v_xor_b32 {p.vWr2}, {p.vWr2}, {t3}")
        a(f"v_lshl_add_u32 {p.vWr2}, {p.vWr2}, 4, {t1}")
        assert L_W == 0
        a(f"v_lshrrev_b32 {t0}, 1, {lb}")
        a(f"v_lshlrev_b32 {t0}, 12, {t0}")
        a(f"v_and_b32 {t1}, 1, {lb}")
        a(f"v_lshl_add_u32 {t0}, {t1}, 6, {t0}")
        a(f"v_lshl_add_u32 {t0}, {lj}, 4, {t0}")
        a(f"s_lshl_b32 {st0}, {sN}, 17")
        a(f"s_lshl_b32 {st1}, {sHf}, 7")
        a(f"s_add_u32 {st0}, {st0}, {st1}")
        a(f"s_lshl_b32 {st1}, {wv}, 14")
        a(f"s_add_u32 {st0}, {st0}, {st1}")
        a(f"s_add_u32 {st0}, {st0}, {FP}")
        a(f"v_add_u32 {p.vFPp}, {st0}, {t0}")
    def ffn_part(p, wf, ob, fa, fb):
        a = p.a
        for t in range(3):
            a(f"ds_read_b128 {ob[4*t:4*t+4]}, {p.vQr} offset:{(L_H - L_Q) + 64*t}")
            for hf in range(2):
                a(f"ds_read_b64_tr_b16 {wf[4*t+2*hf:4*t+2*hf+2]}, {p.vWr} offset:{(t + 4)*8192 + hf*1024}")
        a(f"ds_read_b64 {ob[12:14]}, {p.vH2} offset:{(L_H - L_Q) + 192}")
        a(f"ds_read_b64_tr_b16 {wf[12:14]}, {p.vWr2} offset:{224*256}")
        a("s_waitcnt lgkmcnt(0)")
        a(f"v_mfma_f32_16x16x32_bf16 {fa}, {wf[0:4]}, {ob[0:4]}, 0")
        a(f"v_mfma_f32_16x16x32_bf16 {fb}, {wf[4:8]}, {ob[4:8]}, 0")
        a(f"v_mfma_f32_16x16x32_bf16 {fa}, {wf[8:12]}, {ob[8:12]}, {fa}")
        a(f"v_mfma_f32_16x16x16_bf16 {fb}, {wf[12:14]}, {ob[12:14]}, {fb}")
    def attn_part(p, wf, ob, fa, fb, waves):
        a = p.a
        for t in range(4):
            a(f"ds_read_b128 {ob[4*t:4*t+4]}, {p.vQr} offset:{(L_O - L_Q) + 64*t}")
            for hf in range(2):
                a(f"ds_read_b64_tr_b16 {wf[4*t+2*hf:4*t+2*hf+2]}, {p.vWr} offset:{t*8192 + hf*1024}")
        for t in range(4):
            d = fa if t % 2 == 0 else fb
            a(f"s_waitcnt lgkmcnt({9 - 3*t})")
            a(f"v_mfma_f32_16x16x32_bf16 {d}, {wf[4*t:4*t+4]}, {ob[4*t:4*t+4]}, {d}")
        for k in range(0, 4, 2):
            a(f"v_pk_add_f32 {fa[k:k+2]}, {fa[k:k+2]}, {fb[k:k+2]}")
        tag(a, fa)
        a(f"s_mov_b64 exec, {sHalf}")
        a(f"buffer_store_dwordx4 {fa}, {p.vFPp}, {sWS}, 0 offen {hs}")
        a("s_mov_b64 exec, -1")
        stamp(p, "Fpub", waves)
    def finish(p, lab, waves):
        a = p.a
        if probe or stamps:
            a("s_waitcnt vmcnt(0)")
            stamp(p, "end", waves)
            a("s_waitcnt lgkmcnt(0)")
        if probe and p.stamps:
            pr = p.stamps[0][1]
            now = p.S(2)
            a(f"s_mov_b32 {sSpin}, 0")
            a.label(f"L_hold{lab}")
            a(f"s_memrealtime {now}")
            a("s_waitcnt lgkmcnt(0)")
            a(f"s_sub_u32 {st0}, {now[0]}, {pr[0]}")
            a(f"s_add_u32 {sSpin}, {sSpin}, 1")
            a(f"s_cmp_gt_u32 {sSpin}, 100000")
            a("s_cbranch_scc1 L_end")
            a(f"s_cmp_lt_u32 {st0}, 4000")
            a(f"s_cbranch_scc1 L_hold{lab}")
        if stamps:
            a(f"s_lshl_b32 {st0}, s2, 3")
            a(f"s_add_u32 {st0}, {st0}, {wv}")
            a(f"s_lshl_b32 {st0}, {st0}, 7")
            a(f"s_add_u32 {st0}, {st0}, {ST}")
            a("s_mov_b64 exec, 1")
            for i, r_ in p.stamps:
                a(f"v_mov_b32 {t0}, {r_[0]}")
                a(f"buffer_store_dword {t0}, off, {sWS}, {st0} offset:{4*i}")
                a("s_nop 1")
        a("s_endpgm")

    PL = mkpath(P0)
    a, S, V = PL.a, PL.S, PL.V
    sK, sV_, sS1, sWO, sW2 = [S(4) for _ in range(5)]
    sS1off, sS1step, sLdsW = S(), S(), S()
    a(f"s_lshl_b32 {st1}, {sKh}, 9")
    a(f"s_lshl_b32 {st2}, {wv}, 7")
    a(f"s_add_u32 {st1}, {st1}, {st2}")
    a(f"s_mul_i32 {st1}, {st1}, {sStride}")
    a(f"s_lshl_b32 {st2}, {sCb}, 7")
    a(f"s_add_u32 {sS1off}, {st1}, {st2}")
    a(f"s_lshl_b32 {sS1step}, {sStride}, 3")
    a(f"s_lshl_b32 {sLdsW}, {wv}, 15")
    vS1 = V(2)
    a(f"v_lshrrev_b32 {t0}, 3, {lane}")
    a(f"v_and_b32 {t1}, 7, {lane}")
    a(f"v_and_b32 {t2}, 2, {t0}")
    a(f"v_xor_b32 {t1}, {t1}, {t2}")
    a(f"v_lshlrev_b32 {t1}, 4, {t1}")
    a(f"v_mul_lo_u32 {t0}, {t0}, {sStride}")
    a(f"v_add_u32 {vS1[0]}, {t0}, {t1}")
    a(f"v_xor_b32 {t1}, 64, {t1}")
    a(f"v_add_u32 {vS1[1]}, {t0}, {t1}")
    a(f"s_lshl_b32 {sS1[2]}, {sStride}, 10")
    a("s_cmp_lt_u32 s2, 240")
    a(f"s_cselect_b32 {sS1[2]}, {sS1[2]}, 0")
    a(f"s_mov_b32 {sS1[3]}, 0x20000")
    if PRIO:
        a(f"s_setprio {PRIO}")
    a("s_cmp_lt_u32 s2, 128")
    a("s_waitcnt lgkmcnt(0)")
    a(f"s_cselect_b32 {sS1[0]}, s10, s16")
    a(f"s_cselect_b32 {sS1[1]}, s11, s17")
    a(f"s_and_b32 {sS1[1]}, {sS1[1]}, 0xffff")
    big = []
    state = {"n": 0}
    NS, NK, NVV, NW = 16, 48, 80, 95
    vK = V(4); vWo = V(); vW2 = V(); vV = V(128)
    sKV, sRot, sRot2, sWo, sW2o, sLdsI = S(), S(), S(), S(), S(), S()
    def issue(count=1, paced=True):
        for _ in range(count):
            n = state["n"]
            if n >= NW: return
            dd = D
            if DV and NV <= n < NVV: dd = DV
            if DW and n >= NVV: dd = DW
            if paced and n - dd >= 0:
                a.wait_vm(big[n - dd])
            if n < NS:
                a(f"s_add_u32 m0, {sLdsW}, {16384 + 1024*n}")
                a.vmem(f"buffer_load_dwordx4 {vS1[n&1]}, {sS1}, {sS1off} offen {FL} lds", f"S{n}")
                big.append(f"S{n}")
                if n < NS - 1:
                    a(f"s_add_u32 {sS1off}, {sS1off}, {sS1step}")
            elif n < NVV:
                p = (n - NS) & 31
                if KVM == 0:
                    a(f"s_add_u32 {st0}, {sRot}, {p}")
                    a(f"s_and_b32 {st0}, {st0}, 31")
                else:
                    a(f"s_add_u32 {st0}, {sRot2 if p & 1 else sRot}, {p >> 1}")
                    a(f"s_and_b32 {st0}, {st0}, 15")
                    if p & 1:
                        a(f"s_or_b32 {st0}, {st0}, 16")
                a(f"s_lshl_b32 {st0}, {st0}, 10")
                a(f"s_add_u32 {st0}, {st0}, {sKV}")
                if n < NK:
                    a(f"s_add_u32 m0, {sLdsW}, {1024*p}")
                    a.vmem(f"buffer_load_dwordx4 {vK[p&3]}, {sK}, {st0} offen {FL} lds", f"K{p}")
                    big.append(f"K{p}")
                else:
                    a.vmem(f"buffer_load_dwordx4 {vV[4*p:4*p+4]}, {l16}, {sV_}, {st0} offen {FL}", f"V{p}")
                    big.append(f"V{p}")
            else:
                i = n - NVV
                if i < 7:
                    a(f"s_add_u32 {st0}, {sW2o}, {i*16*2048}")
                    a(f"s_add_u32 m0, {sLdsI}, {L_W + 32768 + i*4096}")
                    a.vmem(f"buffer_load_dwordx4 {vW2}, {sW2}, {st0} offen {FL} lds", f"W{i}")
                else:
                    a(f"s_add_u32 {st0}, {sWo}, {(i - 7)*2048}")
                    a(f"s_add_u32 m0, {sLdsI}, {L_W + (i - 7)*4096}")
                    a.vmem(f"buffer_load_dwordx4 {vWo}, {sWO}, {st0} offen {FL} lds", f"W{i}")
                big.append(f"W{i}")
            state["n"] = n + 1
    def issue_until(n):
        issue(max(0, n - state["n"]))
    def land(tagname, extra=None):
        while tagname not in big:
            issue(1)
        idx = big.index(tagname)
        while state["n"] < NW:
            n = state["n"]
            dd = D
            if DV and NV <= n < NVV: dd = DV
            if DW and n >= NVV: dd = DW
            if n - dd > idx or (extra is not None and n - dd == idx): break
            issue(1)
        if extra:
            issue(extra, paced=False)
        a.wait_vm(tagname)
    issue(D)
    a(f"s_load_dword {sE}, s[28:29], {hex(EPO)}")
    srd(a, sK, 6, 1 << 25); srd(a, sV_, 8, 1 << 25); srd(a, sWO, 12, 1 << 23); srd(a, sW2, 20, 3584*2048)
    srd(a, sWS, 28, WS_SIZE)
    S.give(4, 28)
    common_consts(a)
    a(f"v_and_b32 {t1}, 15, {lane}")
    a(f"v_lshlrev_b32 {t2}, 2, {lj}")
    a(f"v_xor_b32 {t1}, {t1}, {t2}")
    for p in range(4):
        a(f"v_xor_b32 {t2}, {p}, {t1}")
        a(f"v_lshlrev_b32 {t2}, 4, {t2}")
        a(f"v_lshl_add_u32 {vK[p]}, {lj}, 8, {t2}")
    a(f"s_lshl_b32 {sKV}, s2, 17")
    a(f"s_add_u32 {sKV}, {sKV}, {sLdsW}")
    a(f"s_lshr_b32 {st0}, s2, 3")
    if KVM == 0:
        a(f"s_lshl_b32 {sRot}, {wv}, 3")
        a(f"s_add_u32 {sRot}, {sRot}, {st0}")
    else:
        a(f"s_lshl_b32 {sRot}, {wv}, 2")
        a(f"s_add_u32 {sRot}, {sRot}, {st0}")
        a(f"s_add_u32 {sRot2}, {sRot}, 2")
    issue(1)
    a(f"v_and_b32 {t1}, 15, {lane}")
    a(f"v_lshlrev_b32 {t2}, 1, {lj}")
    a(f"v_xor_b32 {t1}, {t1}, {t2}")
    a(f"s_lshl_b32 {st0}, {wv}, 2")
    a(f"s_and_b32 {st0}, {st0}, 8")
    a(f"v_xor_b32 {t1}, {st0}, {t1}")
    a(f"v_lshlrev_b32 {t1}, 4, {t1}")
    a(f"v_lshl_add_u32 {vWo}, {lj}, 14, {t1}")
    a(f"v_lshl_add_u32 {vW2}, {lj}, 11, {t1}")
    a(f"s_lshl_b32 {st0}, {wv}, 5")
    a(f"s_lshl_b32 {st1}, {sHf}, 7")
    a(f"s_add_u32 {st0}, {st0}, {st1}")
    a(f"s_lshl_b32 {st0}, {st0}, 11")
    a(f"s_lshl_b32 {st1}, {sN}, 8")
    a(f"s_add_u32 {sWo}, {st0}, {st1}")
    a(f"s_mul_i32 {st0}, {sHf}, 112")
    a(f"s_lshl_b32 {st2}, {wv}, 2")
    a(f"s_add_u32 {st0}, {st0}, {st2}")
    a(f"s_lshl_b32 {st0}, {st0}, 11")
    a(f"s_add_u32 {sW2o}, {st0}, {st1}")
    a(f"s_lshl_b32 {sLdsI}, {wv}, 10")
    issue(1)
    final_addrs(PL)
    issue(1)
    vOw = V(); vPr = V()
    a(f"v_mul_u32_u24 {t0}, 144, {lj}")
    a(f"v_lshl_add_u32 {t0}, {lb}, 4, {t0}")
    a(f"s_mul_i32 {st0}, {wv}, 4608")
    a(f"s_add_u32 {st0}, {st0}, {L_OS}")
    a(f"v_add_u32 {vOw}, {st0}, {t0}")
    a(f"v_lshlrev_b32 {t0}, 7, {lj}")
    a(f"v_lshl_add_u32 {t0}, {lb}, 4, {t0}")
    a(f"s_lshl_b32 {st0}, {wv}, 11")
    a(f"s_add_u32 {st0}, {st0}, {L_P}")
    a(f"v_add_u32 {vPr}, {st0}, {t0}")
    sPlo, sPhi = S(), S()
    a(f"s_mov_b32 {sPlo}, 0x05040100")
    a(f"s_mov_b32 {sPhi}, 0x07060302")
    land("S15")
    a("s_waitcnt lgkmcnt(0)")
    make_tags(a)
    stamp(PL, "Slanded", LW)
    a("s_barrier")
    issue(N2)
    assert state["n"] <= NS + 16
    a("s_barrier")
    issue_until(GS)
    a("s_barrier")
    land("K31")
    stamp(PL, "Klanded", LW)
    a("s_barrier")
    issue(N5)
    assert state["n"] <= NVV
    stamp(PL, "LB5", LW)
    a("s_barrier")
    Pp = V(16); vt = V(32); acc = V(32)
    def perm_pair(G, ip):
        x0 = vV[4*(8*G + 2*ip):4*(8*G + 2*ip) + 4]
        x1 = vV[4*(8*G + 2*ip + 1):4*(8*G + 2*ip + 1) + 4]
        for e in range(8):
            a(f"v_perm_b32 {vt[4*e + ip]}, {x1[e>>1]}, {x0[e>>1]}, {sPhi if e & 1 else sPlo}")
    def pv(G):
        for e in range(8):
            c = "0" if G == 0 else str(acc[4*e:4*e+4])
            a(f"v_mfma_f32_16x16x32_bf16 {acc[4*e:4*e+4]}, {vt[4*e:4*e+4]}, {Pp[4*G:4*G+4]}, {c}")
    if not STREAM:
        for G in range(4):
            a(f"ds_read_b128 {Pp[4*G:4*G+4]}, {vPr} offset:{512*G}")
        for G in range(4):
            for ip in range(4):
                last = f"V{8*G + 2*ip + 1}"
                if last in big and state["n"] - big.index(last) > D and state["n"] < NVV + D - 1:
                    issue(1)
                if G == 3 and ip == 3:
                    land(last, TW)
                    stamp(PL, "Vlanded", LW)
                else:
                    land(last)
                perm_pair(G, ip)
            if G == 0:
                a("s_waitcnt lgkmcnt(0)")
            pv(G)
        a(f"s_mov_b64 exec, {sHalf}")
        for e in range(8):
            a(f"ds_write_b128 {vOw}, {acc[4*e:4*e+4]} offset:{576*e}")
        a("s_mov_b64 exec, -1")
        a("s_waitcnt lgkmcnt(0)")
    else:
        land("V31")
        stamp(PL, "Vlanded", LW)
    a("s_barrier")
    land("W6")
    stamp(PL, "W2landed", LW)
    a("s_barrier")
    issue(NW, paced=False)
    wf, ob, fa, fb = vV[0:16], vV[16:32], vV[32:36], vV[36:40]
    if not STREAM:
        ffn_part(PL, wf, ob, fa, fb)
    a("s_waitcnt vmcnt(0)")
    stamp(PL, "Wlanded", LW)
    a("s_barrier")
    if not STREAM:
        attn_part(PL, wf, ob, fa, fb, LW)
    finish(PL, "L", LW)

    PC = mkpath(P0)
    a, S, V = PC.a, PC.S, PC.V
    a.label("L_compute")
    sX, sB1, sB2, sOUT = [S(4) for _ in range(4)]
    cw = S()
    a(f"s_sub_u32 {cw}, {wv}, 4")
    sXa, sXb = S(), S()
    vX = V()
    a(f"v_lshrrev_b32 {t0}, 5, {lane}")
    a(f"v_and_b32 {t1}, 31, {lane}")
    a(f"v_lshlrev_b32 {t1}, 4, {t1}")
    a(f"v_lshl_add_u32 {vX}, {t0}, 11, {t1}")
    a(f"s_lshl_b32 {st1}, {cw}, 12")
    a(f"s_lshl_b32 {st2}, {sKh}, 10")
    a(f"s_add_u32 {sXa}, {st1}, {st2}")
    a(f"s_xor_b32 {sXb}, {sXa}, 1024")
    vXw = V()
    a(f"s_mul_i32 {st0}, {cw}, {2*XNS}")
    a(f"s_add_u32 {st0}, {st0}, {L_XN}")
    a(f"v_mul_u32_u24 {t0}, {XNS}, {t0}")
    a(f"v_add3_u32 {vXw}, {t0}, {t1}, {st0}")
    a("s_waitcnt lgkmcnt(0)")
    srd(a, sX, 4, 16384)
    xr = V(16)
    if True:
        for c in range(4):
            a.vmem(f"buffer_load_dwordx4 {xr[4*c:4*c+4]}, {vX}, {sX}, {sXa if c < 2 else sXb} offen offset:{512*(c&1)}", "x")
    a(f"s_load_dword {sE}, s[28:29], {hex(EPO)}")
    srd(a, sB1, 18, 7168); srd(a, sB2, 22, 2048); srd(a, sOUT, 24, 16384); srd(a, sWS, 28, WS_SIZE)
    S.give(4, 28)
    common_consts(a)
    if STREAM:
        for _ in range(8):
            a("s_barrier")
        finish(PC, "C0", CW)
        keep = (a.lines + ["L_end:", "s_endpgm"], list(stamp_names))
    sB, sG, sSp = S(), S(), S()
    a(f"s_lshr_b32 {sB}, s2, 5")
    a(f"s_bfe_u32 {sG}, s2, 0x20003")
    a(f"s_and_b32 {sSp}, s2, 7")
    tq = V(); th = V(); tl = V()
    a(f"v_and_b32 {tq}, 255, v0")
    a(f"v_lshrrev_b32 {th}, 5, {tq}")
    a(f"v_and_b32 {tl}, 31, {tq}")
    vOut = V(); xo = V(2); b2o = V(2); b1o = V(2)
    a(f"s_lshr_b32 {st0}, {sHf}, 2")
    a(f"s_lshl_b32 {st0}, {st0}, 5")
    a(f"s_lshl_b32 {st1}, {sN}, 8")
    a(f"s_add_u32 {st0}, {st0}, {st1}")
    a(f"v_and_b32 {t0}, 3, {lane}")
    a(f"v_lshl_add_u32 {t0}, {t0}, 3, {st0}")
    a(f"s_and_b32 {st1}, {sHf}, 3")
    a(f"s_lshl_b32 {st1}, {st1}, 12")
    a(f"v_bfe_u32 {t1}, {lane}, 2, 1")
    a(f"v_lshl_add_u32 {t1}, {t1}, 11, {st1}")
    a(f"v_add_u32 {vOut}, {t0}, {t1}")
    a.vmem(f"buffer_load_dwordx2 {xo}, {vOut}, {sX}, 0 offen", "xo")
    a.vmem(f"buffer_load_dwordx2 {b2o}, {t0}, {sB2}, 0 offen", "b2o")
    vGq = V(); vGh = V(); vGl = V()
    sGq = S(2); sGh = S(2)
    a(f"s_lshl_b32 {st0}, {sB}, 14")
    a(f"s_lshl_b32 {st1}, {sG}, 12")
    a(f"s_add_u32 {sGq[0]}, {st0}, {st1}")
    assert QP == 0
    a(f"s_add_u32 {sGq[1]}, {sGq[0]}, 131072")
    a(f"v_lshlrev_b32 {vGq}, 4, {tq}")
    a(f"s_mul_i32 {st0}, {sHf}, 448")
    a(f"s_add_u32 {sGh[0]}, {st0}, {HP}")
    a(f"s_add_u32 {sGh[1]}, {sGh[0]}, 114688")
    a(f"v_mul_u32_u24 {t1}, 14336, {th}")
    a(f"v_min_u32 {t2}, 27, {tl}")
    a(f"v_lshl_add_u32 {vGh}, {t2}, 4, {t1}")
    a(f"s_mul_i32 {st0}, {sHf}, 224")
    a(f"v_lshlrev_b32 {t2}, 3, {t2}")
    a.vmem(f"buffer_load_dwordx2 {b1o}, {t2}, {sB1}, {st0} offen", "b1o")
    S.give(sX); S.give(sB1); S.give(sB2)
    a(f"v_mul_u32_u24 {t0}, {QS}, {th}")
    a(f"v_lshl_add_u32 {t0}, {tl}, 3, {t0}")
    a(f"v_add_u32 {vGl}, {L_Q}, {t0}")
    mA = V.mark()
    f = V(32)
    a.wait_vm("x")
    for i in range(16):
        unpack(a, f[2*i], f[2*i+1], xr[i])
    s4 = V(4)
    for k in range(4):
        a(f"v_add_f32 {s4[k]}, {f[k]}, {f[4+k]}")
    for i in range(8, 32):
        a(f"v_add_f32 {s4[i&3]}, {s4[i&3]}, {f[i]}")
    sa, sb = s4[0], s4[1]
    def sum4():
        a(f"v_add_f32 {s4[0]}, {s4[0]}, {s4[1]}")
        a(f"v_add_f32 {s4[2]}, {s4[2]}, {s4[3]}")
        a(f"v_add_f32 {s4[0]}, {s4[0]}, {s4[2]}")
        for k in (8, 4, 2, 1):
            ror(a, sa, k, "add")
        swap16(a, sa, t0, "add")
    sum4()
    mu = V(); d4 = V(4)
    a(f"v_mul_f32 {mu}, 0x3a800000, {sa}")
    for i in range(0, 32, 4):
        for k in range(4):
            a(f"v_sub_f32 {d4[k]}, {f[i+k]}, {mu}")
        for k in range(4):
            a(f"v_mul_f32 {s4[k]}, {d4[k]}, {d4[k]}" if i == 0 else f"v_fmac_f32 {s4[k]}, {d4[k]}, {d4[k]}")
    sum4()
    a(f"v_mul_f32 {sa}, 0x3a800000, {sa}")
    a(f"v_cvt_pk_bf16_f32 {t0}, {mu}, {sa}")
    unpack(a, mu, sa, t0)
    a(f"v_add_f32 {sa}, 0x3727c5ac, {sa}")
    a(f"v_cvt_pk_bf16_f32 {t0}, {sa}, {sa}")
    a(f"v_lshlrev_b32 {sa}, 16, {t0}")
    a(f"v_sqrt_f32 {sa}, {sa}")
    a(f"v_cvt_pk_bf16_f32 {t0}, {sa}, {sa}")
    a(f"v_lshlrev_b32 {sa}, 16, {t0}")
    a(f"v_rcp_f32 {sb}, {sa}")
    for i in range(8):
        a(f"v_sub_f32 {t0}, {f[2*i]}, {mu}")
        a(f"v_sub_f32 {t1}, {f[2*i+1]}, {mu}")
        a(f"v_cvt_pk_bf16_f32 {t0}, {t0}, {t1}")
        unpack(a, f[2*i], f[2*i+1], t0)
        for k in (2*i, 2*i+1):
            a(f"v_mul_f32 {t0}, {f[k]}, {sb}")
            a(f"v_fma_f32 {t1}, -{t0}, {sa}, {f[k]}")
            a(f"v_fma_f32 {f[k]}, {t1}, {sb}, {t0}")
        a(f"v_cvt_pk_bf16_f32 {xr[i]}, {f[2*i]}, {f[2*i+1]}")
    a(f"ds_write_b128 {vXw}, {xr[0:4]}")
    a(f"ds_write_b128 {vXw}, {xr[4:8]} offset:512")
    V.release(mA)
    sLdsC = S()
    a(f"s_lshl_b32 {sLdsC}, {cw}, 15")
    mB = V.mark()
    vXn = V(); vTr = V(4); vS1w = V(); vS1r = V(); vPub = V()
    a(f"v_mul_u32_u24 {t0}, {XNS}, {lb}")
    a(f"v_lshl_add_u32 {t0}, {lj}, 4, {t0}")
    a(f"s_lshl_b32 {st0}, {cw}, 8")
    a(f"s_add_u32 {st0}, {st0}, {L_XN}")
    a(f"v_add_u32 {vXn}, {st0}, {t0}")
    a(f"v_bfe_u32 {t0}, {lane}, 2, 2")
    a(f"v_lshl_add_u32 {t1}, {lj}, 3, {t0}")
    a(f"v_lshlrev_b32 {t1}, 7, {t1}")
    a(f"v_and_b32 {t2}, 1, {lane}")
    a(f"v_lshl_add_u32 {t1}, {t2}, 3, {t1}")
    a(f"s_add_u32 {st0}, {sLdsC}, 16384")
    a(f"v_add_u32 {t1}, {st0}, {t1}")
    a(f"v_and_b32 {t0}, 2, {t0}")
    a(f"v_and_b32 {t2}, 1, {lj}")
    a(f"v_lshl_or_b32 {t0}, {t2}, 2, {t0}")
    a(f"v_bfe_u32 {t2}, {lane}, 1, 1")
    a(f"v_or_b32 {t0}, {t0}, {t2}")
    for ct in range(4):
        a(f"v_xor_b32 {t2}, {2*ct}, {t0}")
        a(f"v_lshl_add_u32 {vTr[ct]}, {t2}, 4, {t1}")
    a(f"v_mul_u32_u24 {t0}, {S1R}, {lb}")
    a(f"v_lshl_add_u32 {t0}, {lj}, 4, {t0}")
    a(f"s_mul_i32 {st0}, {cw}, {S1W}")
    a(f"s_add_u32 {st0}, {st0}, {L_S1}")
    a(f"v_add_u32 {vS1w}, {st0}, {t0}")
    a(f"s_lshl_b32 {st0}, {cw}, 2")
    a(f"v_add_u32 {t3}, {st0}, {lj}")
    a(f"v_mul_u32_u24 {t0}, {S1R}, {t3}")
    a(f"v_and_b32 {t1}, 15, {lane}")
    a(f"v_lshl_add_u32 {t0}, {t1}, 4, {t0}")
    a(f"v_add_u32 {vS1r}, {L_S1}, {t0}")
    a(f"s_lshl_b32 {st1}, {sStride}, 1")
    a(f"v_mul_lo_u32 {t2}, {t3}, {st1}")
    a(f"v_lshl_add_u32 {vPub}, {t1}, 4, {t2}")
    sPub = S()
    a("s_cmp_lt_u32 s2, 128")
    a(f"s_cselect_b32 {sPub}, {QP}, {HP}")
    a(f"s_lshl_b32 {st1}, {sStride}, 4")
    a(f"s_mul_i32 {st1}, {st1}, {sKh}")
    a(f"s_add_u32 {sPub}, {sPub}, {st1}")
    a(f"s_lshl_b32 {st1}, {sCb}, 8")
    a(f"s_add_u32 {sPub}, {sPub}, {st1}")
    a("s_cmp_lt_u32 s2, 240")
    a(f"s_cselect_b32 {sPub}, {sPub}, {OOB}")
    a("s_waitcnt lgkmcnt(0)")
    make_tags(a)
    stamp(PC, "LNdone", CW)
    a("s_barrier")
    xnb = V(16); wt = V(64); acc1 = V(16)
    for t in range(4):
        a(f"ds_read_b128 {xnb[4*t:4*t+4]}, {vXn} offset:{64*t}")
        for ct in range(4):
            for hf in range(2):
                o = (t*4 + ct)*4 + hf*2
                a(f"ds_read_b64_tr_b16 {wt[o:o+2]}, {vTr[ct]} offset:{t*4096 + hf*512}")
        if t >= 1:
            a("s_waitcnt lgkmcnt(9)")
            for ct in range(4):
                o = ((t-1)*4 + ct)*4
                c = "0" if t == 1 else str(acc1[4*ct:4*ct+4])
                a(f"v_mfma_f32_16x16x32_bf16 {acc1[4*ct:4*ct+4]}, {wt[o:o+4]}, {xnb[4*(t-1):4*t]}, {c}")
    a("s_waitcnt lgkmcnt(0)")
    for ct in range(4):
        a(f"v_mfma_f32_16x16x32_bf16 {acc1[4*ct:4*ct+4]}, {wt[(12+ct)*4:(12+ct)*4+4]}, {xnb[12:16]}, {acc1[4*ct:4*ct+4]}")
    a(f"s_mov_b64 exec, {sHalf}")
    for ct in range(4):
        a(f"ds_write_b128 {vS1w}, {acc1[4*ct:4*ct+4]} offset:{64*ct}")
    a("s_mov_b64 exec, -1")
    a("s_waitcnt lgkmcnt(0)")
    a("s_barrier")
    a(f"s_cmp_ge_u32 {cw}, 2")
    a("s_cbranch_scc1 L_nopub1")
    for w_ in range(4):
        a(f"ds_read_b128 {wt[4*w_:4*w_+4]}, {vS1r} offset:{w_*S1W}")
    a("s_waitcnt lgkmcnt(0)")
    for k in range(0, 4, 2):
        a(f"v_pk_add_f32 {wt[k:k+2]}, {wt[k:k+2]}, {wt[4+k:6+k]}")
        a(f"v_pk_add_f32 {wt[8+k:10+k]}, {wt[8+k:10+k]}, {wt[12+k:14+k]}")
    for k in range(0, 4, 2):
        a(f"v_pk_add_f32 {wt[k:k+2]}, {wt[k:k+2]}, {wt[8+k:10+k]}")
    tag(a, wt[0:4])
    a(f"buffer_store_dwordx4 {wt[0:4]}, {vPub}, {sWS}, {sPub} offen {hs}")
    stamp(PC, "pub1", [4, 5])
    a.label("L_nopub1")
    V.release(mB)
    final_addrs(PC)
    vOPp = V(); vOPg = V(); vOr = V(); vFr = V()
    a(f"s_lshl_b32 {st0}, {sG}, 18")
    a(f"s_lshl_b32 {st1}, {sB}, 12")
    a(f"s_add_u32 {st0}, {st0}, {st1}")
    a(f"s_lshl_b32 {st1}, {sSp}, 9")
    a(f"s_add_u32 {st0}, {st0}, {st1}")
    a(f"s_add_u32 {st0}, {st0}, {OP}")
    a(f"v_lshlrev_b32 {t0}, 15, {th}")
    a(f"v_lshl_add_u32 {t0}, {tl}, 4, {t0}")
    a(f"v_add_u32 {vOPp}, {st0}, {t0}")
    a(f"s_lshl_b32 {st0}, {sHf}, 15")
    a(f"s_add_u32 {st0}, {st0}, {OP}")
    a(f"v_lshl_add_u32 {t0}, {th}, 12, {st0}")
    a(f"v_lshl_add_u32 {vOPg}, {tl}, 4, {t0}")
    a(f"v_mul_u32_u24 {t0}, 144, {tl}")
    a(f"v_lshl_add_u32 {t0}, {th}, 4, {t0}")
    a(f"v_add_u32 {vOr}, {L_OS}, {t0}")
    a(f"v_lshlrev_b32 {t0}, 4, {th}")
    a(f"v_add_u32 {vFr}, {L_F}, {t0}")
    mC = V.mark()
    vKr = V(4); vPw = V(); vMLw = V()
    a(f"v_and_b32 {t0}, 15, {lane}")
    a(f"v_and_b32 {t1}, 3, {lane}")
    a(f"v_lshlrev_b32 {t1}, 10, {t1}")
    a(f"v_bfe_u32 {t2}, {lane}, 2, 2")
    a(f"v_lshl_add_u32 {t1}, {t2}, 8, {t1}")
    a(f"v_add_u32 {t1}, {sLdsC}, {t1}")
    a(f"v_xor_b32 {t0}, {t0}, {lj}")
    for t in range(4):
        a(f"v_xor_b32 {t2}, {4*t}, {t0}")
        a(f"v_lshl_add_u32 {vKr[t]}, {t2}, 4, {t1}")
    a(f"v_lshlrev_b32 {t0}, 7, {lj}")
    a(f"v_lshl_add_u32 {t0}, {lb}, 4, {t0}")
    a(f"v_bfe_u32 {t1}, {lane}, 3, 1")
    a(f"v_lshl_add_u32 {t0}, {t1}, 10, {t0}")
    a(f"s_lshl_b32 {st0}, {cw}, 11")
    a(f"s_add_u32 {st0}, {st0}, {L_P}")
    a(f"v_add_u32 {vPw}, {st0}, {t0}")
    a(f"s_lshl_b32 {st0}, {cw}, 3")
    a(f"s_add_u32 {st0}, {st0}, {L_ML}")
    a(f"v_lshl_add_u32 {vMLw}, {lb}, 5, {st0}")
    qa = V(16); qb = V(16)
    for i in range(16):
        a(f"v_mov_b32 {qa[i]}, 0")
        a(f"v_mov_b32 {qb[i]}, 0")
    a("s_barrier")
    stamp(PC, "B3", CW)
    kt = V(64); sc = V(16)
    graw, gg = kt[0:16], kt[16:32]
    gl = [f"buffer_load_dwordx4 {graw[0:4]}, {vGq}, {sWS}, {sGq[0]} offen sc1",
          f"buffer_load_dwordx4 {graw[4:8]}, {vGq}, {sWS}, {sGq[1]} offen sc1",
          f"buffer_load_dwordx4 {graw[8:12]}, {vGh}, {sWS}, {sGh[0]} offen sc1",
          f"buffer_load_dwordx4 {graw[12:16]}, {vGh}, {sWS}, {sGh[1]} offen sc1"]
    for x in gl:
        a(x)
    poll(a, "g", gl, gg, graw, GSLEEP)
    stamp(PC, "gok", CW); count(PC, "g", CW)
    for o in (0, 8):
        a(f"v_pk_add_f32 {gg[o:o+2]}, {gg[o:o+2]}, {gg[o+4:o+6]}")
        a(f"v_pk_add_f32 {gg[o+2:o+4]}, {gg[o+2:o+4]}, {gg[o+6:o+8]}")
        a(f"v_cvt_pk_bf16_f32 {gg[o+4]}, {gg[o]}, {gg[o+1]}")
        a(f"v_cvt_pk_bf16_f32 {gg[o+5]}, {gg[o+2]}, {gg[o+3]}")
    a(f"ds_write_b64 {vGl}, {gg[4:6]}")
    g0 = gg[8:12]
    for k in range(2):
        unpack(a, g0[0], g0[1], gg[12+k])
        unpack(a, g0[2], g0[3], b1o[k])
        a(f"v_add_f32 {g0[0]}, {g0[0]}, {g0[2]}")
        a(f"v_add_f32 {g0[1]}, {g0[1]}, {g0[3]}")
        a(f"v_cvt_pk_bf16_f32 {t0}, {g0[0]}, {g0[1]}")
        unpack(a, g0[0], g0[1], t0)
        a(f"v_max_f32 {g0[0]}, 0, {g0[0]}")
        a(f"v_max_f32 {g0[1]}, 0, {g0[1]}")
        a(f"v_mul_f32 {g0[0]}, {g0[0]}, {g0[0]}")
        a(f"v_mul_f32 {g0[1]}, {g0[1]}, {g0[1]}")
        a(f"v_cvt_pk_bf16_f32 {gg[12+k]}, {g0[0]}, {g0[1]}")
    a(f"ds_write_b64 {vGl}, {gg[12:14]} offset:{L_H - L_Q}")
    a("s_waitcnt lgkmcnt(0)")
    a("s_barrier")
    stamp(PC, "B4", CW)
    a(f"s_mov_b64 exec, {sHalf}")
    for t in range(4):
        a(f"ds_read_b128 {qa[4*t:4*t+4]}, {PC.vQr} offset:{64*t}")
    a(f"s_not_b64 exec, exec")
    for t in range(4):
        a(f"ds_read_b128 {qb[4*t:4*t+4]}, {PC.vQr} offset:{64*t}")
    a("s_mov_b64 exec, -1")
    def kreads(bt):
        for T2 in range(2):
            for t in range(4):
                o = (bt & 1)*32 + (T2*4 + t)*4
                a(f"ds_read_b128 {kt[o:o+4]}, {vKr[t]} offset:{(bt*2 + T2)*4096}")
    def kmm(bt):
        q = qa if bt < 2 else qb
        for t in range(4):
            for T2 in range(2):
                T = (bt & 1)*2 + T2
                o = (bt & 1)*32 + (T2*4 + t)*4
                c = "0" if (t == 0 and bt < 2) else str(sc[4*T:4*T+4])
                a(f"v_mfma_f32_16x16x32_bf16 {sc[4*T:4*T+4]}, {kt[o:o+4]}, {q[4*t:4*t+4]}, {c}")
    kreads(0)
    a("s_waitcnt lgkmcnt(7)")
    kreads(1)
    for bt in range(4):
        a(f"s_waitcnt lgkmcnt({8 if bt < 3 else 0})")
        kmm(bt)
        if bt + 2 < 4:
            a("s_nop 7")
            kreads(bt + 2)
    for i in range(0, 16, 2):
        a(f"v_cvt_pk_bf16_f32 {t0}, {sc[i]}, {sc[i+1]}")
        unpack(a, sc[i], sc[i+1], t0)
        a(f"v_mul_f32 {sc[i]}, {hex(SCALE)}, {sc[i]}")
        a(f"v_mul_f32 {sc[i+1]}, {hex(SCALE)}, {sc[i+1]}")
        a(f"v_cvt_pk_bf16_f32 {t0}, {sc[i]}, {sc[i+1]}")
        unpack(a, sc[i], sc[i+1], t0)
    ml = V(2)
    mw, lw = ml[0], ml[1]
    a(f"v_max3_f32 {mw}, {sc[0]}, {sc[1]}, {sc[2]}")
    for i in range(3, 15, 2):
        a(f"v_max3_f32 {mw}, {mw}, {sc[i]}, {sc[i+1]}")
    a(f"v_max_f32 {mw}, {mw}, {sc[15]}")
    ror(a, mw, 8, "max"); swap16(a, mw, t0, "max"); swap32(a, mw, t0, "max")
    sL2E = S()
    a(f"s_mov_b32 {sL2E}, {hex(LOG2E)}")
    for i in range(16):
        a(f"v_sub_f32 {sc[i]}, {sc[i]}, {mw}")
    for i in range(16):
        a(f"v_mul_f32 {sc[i]}, {sL2E}, {sc[i]}")
    for i in range(16):
        a(f"v_exp_f32 {sc[i]}, {sc[i]}")
    pp = kt[0:8]
    for i in range(8):
        a(f"v_cvt_pk_bf16_f32 {pp[i]}, {sc[2*i]}, {sc[2*i+1]}")
    a(f"ds_write_b128 {vPw}, {pp[0:4]}")
    a(f"ds_write_b128 {vPw}, {pp[4:8]} offset:512")
    for i in range(0, 8, 2):
        a(f"v_pk_add_f32 {sc[i:i+2]}, {sc[i:i+2]}, {sc[8+i:10+i]}")
    for i in range(0, 4, 2):
        a(f"v_pk_add_f32 {sc[i:i+2]}, {sc[i:i+2]}, {sc[4+i:6+i]}")
    a(f"v_pk_add_f32 {sc[0:2]}, {sc[0:2]}, {sc[2:4]}")
    a(f"v_add_f32 {lw}, {sc[0]}, {sc[1]}")
    ror(a, lw, 8, "add"); swap16(a, lw, t0, "add"); swap32(a, lw, t0, "add")
    a("s_mov_b64 exec, 0xff")
    a(f"ds_write_b64 {vMLw}, {ml}")
    a("s_mov_b64 exec, -1")
    a("s_waitcnt lgkmcnt(0)")
    stamp(PC, "QKdone", CW)
    a("s_barrier")
    a(f"s_cmp_lg_u32 {cw}, 3")
    a("s_cbranch_scc1 L_noml")
    m8 = kt[0:8]; e4 = kt[8:12]; mlg = kt[12:14]; vTml = kt[14:16]; tm = kt[16:18]; mlr = kt[18:20]; mu_ = kt[20:22]
    l8 = kt[22]
    a(f"v_lshlrev_b32 {t0}, 5, {lb}")
    a(f"v_add_u32 {t0}, {L_ML}, {t0}")
    a(f"ds_read_b128 {m8[0:4]}, {t0}")
    a(f"ds_read_b128 {m8[4:8]}, {t0} offset:16")
    a(f"v_and_b32 {t1}, 1, {lane}")
    a(f"v_cmp_eq_u32 vcc, 0, {t1}")
    for k in range(2):
        a(f"v_mov_b32 {t1}, {sT[k]}")
        a(f"v_mov_b32 {t2}, {sT[2+k]}")
        a(f"v_cndmask_b32 {vTml[k]}, {t2}, {t1}, vcc")
    sML = S()
    a(f"s_lshl_b32 {sML}, s2, 6")
    a(f"s_add_u32 {sML}, {sML}, {ML}")
    a(f"v_lshlrev_b32 {l8}, 3, {lane}")
    a("s_waitcnt lgkmcnt(0)")
    a(f"v_max3_f32 {mlg[0]}, {m8[0]}, {m8[2]}, {m8[4]}")
    a(f"v_max_f32 {mlg[0]}, {mlg[0]}, {m8[6]}")
    def exps(M):
        for k in range(4):
            a(f"v_sub_f32 {e4[k]}, {m8[2*k]}, {M}")
        for k in range(4):
            a(f"v_mul_f32 {e4[k]}, {sL2E}, {e4[k]}")
        for k in range(4):
            a(f"v_exp_f32 {e4[k]}, {e4[k]}")
    exps(mlg[0])
    a(f"v_mul_f32 {mlg[1]}, {e4[0]}, {m8[1]}")
    for k in range(1, 4):
        a(f"v_fmac_f32 {mlg[1]}, {e4[k]}, {m8[2*k+1]}")
    for k in range(2):
        a(f"v_bfi_b32 {tm[k]}, {vFF}, {vTml[k]}, {mlg[k]}")
    a("s_mov_b64 exec, 0xff")
    a(f"buffer_store_dwordx2 {tm}, {l8}, {sWS}, {sML} offen {hs}")
    a("s_mov_b64 exec, -1")
    stamp(PC, "MLpub", [7])
    a(f"s_and_b32 {sML}, {sML}, 0xfffffe00")
    a(f"s_mov_b32 {sSpin}, 0")
    a.label("L_ml_again")
    a("s_sleep 16")
    a(f"buffer_load_dwordx2 {mlr}, {l8}, {sWS}, {sML} offen sc1")
    a("s_waitcnt vmcnt(0)")
    for k in range(2):
        a(f"v_xor_b32 {mu_[k]}, {vTml[k]}, {mlr[k]}")
    a(f"v_or_b32 {t0}, {mu_[0]}, {mu_[1]}")
    a(f"v_and_b32 {t0}, {vFF}, {t0}")
    a(f"v_cmp_ne_u32 vcc, 0, {t0}")
    a("s_cbranch_vccz L_ml_ok")
    a(f"s_add_u32 {sSpin}, {sSpin}, 1")
    a(f"s_cmp_le_u32 {sSpin}, {SPIN_LIMIT}")
    a("s_cbranch_scc1 L_ml_again")
    a.label("L_ml_ok")
    a(f"v_mov_b32 {t1}, {mu_[0]}")
    ror(a, t1, 8, "max"); swap16(a, t1, t0, "max"); swap32(a, t1, t0, "max")
    a(f"v_sub_f32 {t2}, {mu_[0]}, {t1}")
    a(f"v_mul_f32 {t2}, {sL2E}, {t2}")
    a(f"v_exp_f32 {t2}, {t2}")
    exps(t1)
    a(f"v_mul_f32 {t2}, {t2}, {mu_[1]}")
    ror(a, t2, 8, "add"); swap16(a, t2, t0, "add"); swap32(a, t2, t0, "add")
    a(f"v_rcp_f32 {t2}, {t2}")
    a(f"v_lshlrev_b32 {t0}, 4, {lb}")
    a(f"v_add_u32 {t0}, {L_F}, {t0}")
    for k in range(4):
        a(f"v_mul_f32 {e4[k]}, {e4[k]}, {t2}")
    a("s_mov_b64 exec, 0xff")
    a(f"ds_write_b128 {t0}, {e4}")
    a("s_mov_b64 exec, -1")
    a("s_waitcnt lgkmcnt(0)")
    stamp(PC, "MLok", [7]); count(PC, "ml", [7])
    a.label("L_noml")
    V.release(mC)
    xs = V(8)
    unpack(a, xs[0], xs[1], xo[0]); unpack(a, xs[2], xs[3], xo[1])
    unpack(a, xs[4], xs[5], b2o[0]); unpack(a, xs[6], xs[7], b2o[1])
    for k in range(4):
        a(f"v_add_f32 {xs[k]}, {xs[k]}, {xs[4+k]}")
    sFPr = S()
    a(f"s_lshl_b32 {sFPr}, s2, 12")
    a(f"s_add_u32 {sFPr}, {sFPr}, {FP}")
    a("s_barrier")
    stamp(PC, "B6", CW)
    g = V(16); fc = V(4)
    a(f"ds_read_b128 {fc}, {vFr}")
    for w_ in range(4):
        a(f"ds_read_b128 {g[4*w_:4*w_+4]}, {vOr} offset:{4608*w_}")
    for w_ in range(4):
        a(f"s_waitcnt lgkmcnt({3 - w_})")
        for k in range(4):
            a(f"v_mul_f32 {g[k]}, {g[k]}, {fc[0]}" if w_ == 0 else f"v_fmac_f32 {g[k]}, {g[4*w_+k]}, {fc[w_]}")
    tag(a, g[0:4])
    a(f"buffer_store_dwordx4 {g[0:4]}, {vOPp}, {sWS}, 0 offen {hs}")
    stamp(PC, "Opub", CW)
    a("s_barrier")
    stamp(PC, "B6b", CW)
    oraw = V(32); ou = V(32)
    ol = [f"buffer_load_dwordx4 {oraw[4*s_:4*s_+4]}, {vOPg}, {sWS}, 0 offen offset:{512*s_} sc1" for s_ in range(8)]
    for x in ol:
        a(x)
    wf, ob, fa, fb = V(16), V(16), V(4), V(4)
    ffn_part(PC, wf, ob, fa, fb)
    poll(a, "o", ol, ou, oraw)
    stamp(PC, "Ook", CW); count(PC, "o", CW)
    for step in (16, 8, 4):
        for k in range(0, step, 2):
            a(f"v_pk_add_f32 {ou[k:k+2]}, {ou[k:k+2]}, {ou[step+k:step+k+2]}")
    a(f"v_cvt_pk_bf16_f32 {ou[0]}, {ou[0]}, {ou[1]}")
    a(f"v_cvt_pk_bf16_f32 {ou[1]}, {ou[2]}, {ou[3]}")
    a(f"ds_write_b64 {vGl}, {ou[0:2]} offset:{L_O - L_Q}")
    a("s_waitcnt lgkmcnt(0)")
    a("s_barrier")
    stamp(PC, "B7", CW)
    attn_part(PC, wf, ob, fa, fb, CW)
    a(f"s_cmp_lg_u32 {cw}, 0")
    a("s_cbranch_scc1 L_fin")
    rraw, r = oraw[0:16], ou[0:16]
    rl = [f"buffer_load_dwordx4 {rraw[4*k:4*k+4]}, {l16}, {sWS}, {sFPr} offen offset:{1024*k} sc1" for k in range(4)]
    for x in rl:
        a(x)
    poll(a, "r", rl, r, rraw)
    stamp(PC, "Rok", [4]); count(PC, "r", [4])
    for step in (8, 4):
        for k in range(0, step, 2):
            a(f"v_pk_add_f32 {r[k:k+2]}, {r[k:k+2]}, {r[step+k:step+k+2]}")
    for k in range(4):
        ror(a, r[k], 8, "add")
    for k in range(4):
        a(f"v_mov_b32 {r[4+k]}, {r[k]}")
    for k in range(4):
        a(f"v_permlane16_swap_b32 {r[k]}, {r[4+k]}")
    for k in range(4):
        a(f"v_add_f32 {r[k]}, {r[k]}, {r[4+k]}")
    for k in range(4):
        a(f"v_mov_b32 {r[4+k]}, {r[k]}")
    for k in range(4):
        a(f"v_permlane32_swap_b32 {r[k]}, {r[4+k]}")
    for k in range(4):
        a(f"v_add_f32 {r[k]}, {r[k]}, {r[4+k]}")
    for k in range(4):
        a(f"v_add_f32 {r[k]}, {r[k]}, {xs[k]}")
    a(f"v_cvt_pk_bf16_f32 {r[0]}, {r[0]}, {r[1]}")
    a(f"v_cvt_pk_bf16_f32 {r[1]}, {r[2]}, {r[3]}")
    a("s_mov_b64 exec, 0xff")
    a(f"buffer_store_dwordx2 {r[0:2]}, {vOut}, {sOUT}, 0 offen")
    a(f"s_mov_b32 {st1}, {OOB}")
    a("s_cmp_eq_u32 s2, 0")
    a(f"s_cselect_b32 {st0}, {EPO}, {st1}")
    a(f"v_mov_b32 {t0}, {sE}")
    a("s_mov_b64 exec, 1")
    a(f"buffer_store_dword {t0}, off, {sWS}, {st0}")
    a("s_mov_b64 exec, -1")
    a.label("L_fin")
    finish(PC, "C", CW)
    a.label("L_end")
    a("s_endpgm")

    if STREAM:
        PC.a.lines, stamp_names = keep
    body = pad(P0.a.lines + PL.a.lines + PC.a.lines)
    hdr = open("cdna_kernels/" + NAME + ".s.ref").read().split("; Override launch")[0]
    nv = (max(PL.V.high, PC.V.high) + 7) // 8 * 8
    out = hdr + f"; @launch grid=(256,1,1) block=(512,1,1) lds={LDS_BYTES}\n"
    out += '.amdgcn_target "amdgcn-amd-amdhsa--gfx950"\n.text\n'
    out += f".globl {KNAME}\n.p2align 8\n.type {KNAME},@function\n"
    for ln in body:
        out += (ln if ln.endswith(":") else "    " + ln) + "\n"
    out += '.section .rodata,"a"\n.p2align 6\n'
    out += f".amdhsa_kernel {KNAME}\n"
    out += f"  .amdhsa_next_free_vgpr {nv}\n  .amdhsa_next_free_sgpr 102\n  .amdhsa_accum_offset {nv}\n"
    out += "  .amdhsa_group_segment_fixed_size 0\n  .amdhsa_kernarg_size 104\n  .amdhsa_user_sgpr_count 2\n"
    out += "  .amdhsa_user_sgpr_kernarg_segment_ptr 1\n  .amdhsa_system_sgpr_workgroup_id_x 1\n"
    out += "  .amdhsa_float_denorm_mode_32 3\n"
    out += ".end_amdhsa_kernel\n"
    assert len(stamp_names) <= 32
    return out, stamp_names

if __name__ == "__main__":
    import json
    kw = eval("dict(" + (sys.argv[2] if len(sys.argv) > 2 else "") + ")")
    txt, st = gen(**kw)
    open(sys.argv[1], "w").write(txt)
    json.dump(st, open(sys.argv[1] + ".json", "w"))
```

```python
import sys, copy
from asmlib import *

NAME = "parallel_sum__gqa_block_cached__dense_activation_squared_relu__decode"
KNAME = NAME + "_kernel"

QP, HP, ML, OP, FP, ST = 0x0, 0x40000, 0x80000, 0x100000, 0x200000, 0x400000
EPO = 0x90000
TS = 0xa0000
WS_SIZE = 0x800000
OOB = 0x10000000
L_W = 0
L_OS = 0x10000
L_XN = 0x20000
XNS = 1024 + 16
S1R = 272
S1W = 8 * S1R
L_S1 = L_XN + 8 * XNS
QS = 256 + 16
L_Q = L_S1 + 4 * S1W
L_H = L_Q + 8 * QS
L_O = L_H + 8 * QS
L_ML = L_O + 8 * QS
L_F = L_ML + 256
L_P = L_F + 128
L_C = L_P + 8192
LDS_BYTES = 163840
assert L_C + 16 <= LDS_BYTES
LOG2E = 0x3fb8aa3b
SCALE = 0x3db504f3
SPIN_LIMIT = 100000

def gen(D=6, FL="nt", stamps=False, probe=None, N2=3, GS=40, N5=9, KVM=0, TW=2, STREAM=False, PRIO=0,
        GSLEEP=8, KP=None, RX=(), AP=False, DL=0, VL=False, TR=None, PF=0, CT=None, SP=128, IL=(16, 0), VG=0, SCH=(), N4=0, S1M=0, ST0=False):
    hs = "sc1"
    stamp_names = []
    class Path:
        pass
    def mkpath(parent=None):
        p = Path()
        p.a = Asm()
        p.S = copy.deepcopy(parent.S) if parent else Alloc("s", 30, 102)
        p.V = copy.deepcopy(parent.V) if parent else Alloc("v", 1, 256)
        p.stamps = list(parent.stamps) if parent else []
        return p
    def stamp(p, name, waves):
        if stamps or name == probe:
            names = [n for n, _ in stamp_names]
            if name in names:
                i = names.index(name)
                stamp_names[i] = (name, sorted(set(stamp_names[i][1]) | set(waves)))
            else:
                i = len(stamp_names); stamp_names.append((name, list(waves)))
            r = p.S(2)
            p.stamps.append((i, r))
            p.a(f"s_memrealtime {r}")
    def count(p, name, waves):
        if stamps:
            i = len(stamp_names); stamp_names.append(("#" + name, list(waves)))
            r = p.S(1)
            p.stamps.append((i, r))
            p.a(f"s_mov_b32 {r}, {sSpin}")
    LW, CW, AW = range(4), range(4, 8), range(8)

    P0 = mkpath()
    a, S, V = P0.a, P0.S, P0.V
    a.label(KNAME)
    stamp(P0, "start", AW)
    a("s_cmp_ge_u32 s2, 256")
    a("s_cbranch_scc1 L_end")
    a("s_load_dwordx16 s[4:19], s[0:1], 0")
    a("s_load_dwordx8 s[20:27], s[0:1], 64")
    a("s_load_dwordx2 s[28:29], s[0:1], 96")
    lane = V(); t0 = V(); t1 = V(); t2 = V(); t3 = V(); l16 = V(); lj = V(); lb = V(); vFF = V()
    wv = "s3"
    st0, st1, st2 = S(), S(), S()
    sWS = S(4); sT = S(4); sE = S(); sHalf = S(2); sHf = S(); sN = S(); sStride = S(); sKh = S(); sCb = S(); sSpin = S()
    a(f"v_lshrrev_b32 {t0}, 6, v0")
    a(f"v_and_b32 {lane}, 63, v0")
    a(f"v_readfirstlane_b32 {wv}, {t0}")
    a(f"s_and_b32 {sKh}, s2, 1")
    a(f"s_mov_b32 {sStride}, 7168")
    a("s_cmp_lt_u32 s2, 128")
    a(f"s_cselect_b32 {sStride}, 8192, {sStride}")
    if S1M == 0:
        a(f"s_bfe_u32 {sCb}, s2, 0x60001")
    else:
        a(f"s_lshr_b32 {st0}, {sStride}, 9")
        a(f"s_bfe_u32 {st1}, s2, 0x20001")
        a(f"s_mul_i32 {st0}, {st0}, {st1}")
        a(f"s_bfe_u32 {sCb}, s2, 0x40003")
        a(f"s_add_u32 {sCb}, {sCb}, {st0}")
    a(f"v_lshlrev_b32 {l16}, 4, {lane}")
    a(f"s_cmp_ge_u32 {wv}, 4")
    a("s_cbranch_scc1 L_compute")

    def srd(a, r, lo, size):
        a(f"s_mov_b32 {r[0]}, s{lo}")
        a(f"s_and_b32 {r[1]}, s{lo+1}, 0xffff")
        a(f"s_mov_b32 {r[2]}, {size}")
        a(f"s_mov_b32 {r[3]}, 0x20000")
    def common_consts(a):
        a(f"s_and_b32 {sHf}, s2, 31")
        a(f"s_lshr_b32 {sN}, s2, 5")
        a(f"s_mov_b32 {sHalf[0]}, 0x00ff00ff")
        a(f"s_mov_b32 {sHalf[1]}, 0x00ff00ff")
        a(f"v_lshrrev_b32 {lj}, 4, {lane}")
        a(f"v_and_b32 {lb}, 7, {lane}")
        a(f"v_mov_b32 {vFF}, 0xff")
    def make_tags(a):
        a(f"s_add_u32 {sE}, {sE}, 0xd1a7653b")
        for k in range(4):
            a(f"s_bfe_u32 {sT[k]}, {sE}, {hex(0x80000 + 8*k)}")
    def tag(a, r):
        for k in range(r.n):
            a(f"v_bfi_b32 {r[k]}, {vFF}, {sT[k & 3]}, {r[k]}")
    def orall(a, acc, x):
        n = x.n
        a(f"v_or3_b32 {acc}, {x[0]}, {x[1]}, {x[2]}")
        i = 3
        while i + 1 < n:
            a(f"v_or3_b32 {acc}, {acc}, {x[i]}, {x[i+1]}")
            i += 2
        if i < n:
            a(f"v_or_b32 {acc}, {acc}, {x[i]}")
        a(f"v_and_b32 {acc}, {vFF}, {acc}")
    def poll(a, name, loads, dst, src, sleep=0):
        a(f"s_mov_b32 {sSpin}, 0")
        a.label(f"L_{name}_chk")
        a("s_waitcnt vmcnt(0)")
        for k in range(src.n):
            a(f"v_xor_b32 {dst[k]}, {sT[k & 3]}, {src[k]}")
        orall(a, t0, dst)
        a(f"v_cmp_ne_u32 vcc, 0, {t0}")
        a(f"s_cbranch_vccz L_{name}_ok")
        a(f"s_add_u32 {sSpin}, {sSpin}, 1")
        a(f"s_cmp_gt_u32 {sSpin}, {SPIN_LIMIT}")
        a(f"s_cbranch_scc1 L_{name}_ok")
        if sleep:
            a(f"s_sleep {sleep}")
        for i, ld in enumerate(loads):
            orall(a, t0, dst[4*i:4*i+4])
            a(f"v_cmp_ne_u32 vcc, 0, {t0}")
            a(f"s_cbranch_vccz L_{name}_s{i}")
            a("s_mov_b64 exec, vcc")
            a(ld)
            a("s_mov_b64 exec, -1")
            a.label(f"L_{name}_s{i}")
        a(f"s_branch L_{name}_chk")
        a.label(f"L_{name}_ok")
    def swap16(a, r, tmp, op):
        a(f"v_mov_b32 {tmp}, {r}")
        a(f"v_permlane16_swap_b32 {r}, {tmp}")
        a(f"v_{op}_f32 {r}, {r}, {tmp}")
    def swap32(a, r, tmp, op):
        a(f"v_mov_b32 {tmp}, {r}")
        a(f"v_permlane32_swap_b32 {r}, {tmp}")
        a(f"v_{op}_f32 {r}, {r}, {tmp}")
    def ror(a, r, k, op):
        a(f"v_{op}_f32_dpp {r}, {r}, {r} row_ror:{k} row_mask:0xf bank_mask:0xf")
    def unpack(a, dst_lo, dst_hi, src):
        a(f"v_and_b32 {dst_hi}, 0xffff0000, {src}")
        a(f"v_lshlrev_b32 {dst_lo}, 16, {src}")
    def final_addrs(p):
        a, V, S = p.a, p.V, p.S
        p.vQr = V(); p.vWr = V(); p.vWr2 = V(); p.vFPp = V(); p.vH2 = V()
        a(f"v_mul_u32_u24 {t0}, {QS}, {lb}")
        a(f"v_lshl_add_u32 {t0}, {lj}, 4, {t0}")
        a(f"v_add_u32 {p.vQr}, {L_Q}, {t0}")
        a(f"v_lshlrev_b32 {t0}, 3, {lj}")
        a(f"v_sub_u32 {p.vH2}, {p.vQr}, {t0}")
        a(f"v_bfe_u32 {t0}, {lane}, 2, 2")
        a(f"v_and_b32 {t2}, 1, {lane}")
        a(f"v_lshlrev_b32 {t2}, 3, {t2}")
        a(f"v_bfe_u32 {t3}, {lane}, 1, 1")
        a(f"s_lshl_b32 {st0}, {wv}, 1")
        a(f"v_or_b32 {t3}, {st0}, {t3}")
        a(f"v_lshlrev_b32 {t1}, 1, {t0}")
        a(f"v_xor_b32 {t3}, {t3}, {t1}")
        a(f"v_lshl_add_u32 {t1}, {lj}, 3, {t0}")
        a(f"v_lshl_add_u32 {t1}, {t1}, 8, {t2}")
        a(f"v_and_b32 {p.vWr}, 1, {lj}")
        a(f"v_lshlrev_b32 {p.vWr}, 3, {p.vWr}")
        a(f"v_xor_b32 {p.vWr}, {p.vWr}, {t3}")
        a(f"v_lshl_add_u32 {p.vWr}, {p.vWr}, 4, {t1}")
        a(f"v_lshl_add_u32 {t1}, {lj}, 2, {t0}")
        a(f"v_lshl_add_u32 {t1}, {t1}, 8, {t2}")
        a(f"v_lshrrev_b32 {p.vWr2}, 1, {lj}")
        a(f"v_lshlrev_b32 {p.vWr2}, 3, {p.vWr2}")
        a(f"v_xor_b32 {p.vWr2}, {p.vWr2}, {t3}")
        a(f"v_lshl_add_u32 {p.vWr2}, {p.vWr2}, 4, {t1}")
        assert L_W == 0
        a(f"v_lshrrev_b32 {t0}, 1, {lb}")
        a(f"v_lshlrev_b32 {t0}, 12, {t0}")
        a(f"v_and_b32 {t1}, 1, {lb}")
        a(f"v_lshl_add_u32 {t0}, {t1}, 6, {t0}")
        a(f"v_lshl_add_u32 {t0}, {lj}, 4, {t0}")
        a(f"s_lshl_b32 {st0}, {sN}, 17")
        a(f"s_lshl_b32 {st1}, {sHf}, 7")
        a(f"s_add_u32 {st0}, {st0}, {st1}")
        a(f"s_lshl_b32 {st1}, {wv}, 14")
        a(f"s_add_u32 {st0}, {st0}, {st1}")
        a(f"s_add_u32 {st0}, {st0}, {FP}")
        a(f"v_add_u32 {p.vFPp}, {st0}, {t0}")
    def ffn_part(p, wf, ob, fa, fb):
        a = p.a
        for t in range(3):
            a(f"ds_read_b128 {ob[4*t:4*t+4]}, {p.vQr} offset:{(L_H - L_Q) + 64*t}")
            for hf in range(2):
                a(f"ds_read_b64_tr_b16 {wf[4*t+2*hf:4*t+2*hf+2]}, {p.vWr} offset:{(t + 4)*8192 + hf*1024}")
        a(f"ds_read_b64 {ob[12:14]}, {p.vH2} offset:{(L_H - L_Q) + 192}")
        a(f"ds_read_b64_tr_b16 {wf[12:14]}, {p.vWr2} offset:{224*256}")
        a("s_waitcnt lgkmcnt(0)")
        a(f"v_mfma_f32_16x16x32_bf16 {fa}, {wf[0:4]}, {ob[0:4]}, 0")
        a(f"v_mfma_f32_16x16x32_bf16 {fb}, {wf[4:8]}, {ob[4:8]}, 0")
        a(f"v_mfma_f32_16x16x32_bf16 {fa}, {wf[8:12]}, {ob[8:12]}, {fa}")
        a(f"v_mfma_f32_16x16x16_bf16 {fb}, {wf[12:14]}, {ob[12:14]}, {fb}")
    def attn_part(p, wf, ob, fa, fb, waves):
        a = p.a
        for t in range(4):
            a(f"ds_read_b128 {ob[4*t:4*t+4]}, {p.vQr} offset:{(L_O - L_Q) + 64*t}")
            for hf in range(2):
                a(f"ds_read_b64_tr_b16 {wf[4*t+2*hf:4*t+2*hf+2]}, {p.vWr} offset:{t*8192 + hf*1024}")
        for t in range(4):
            d = fa if t % 2 == 0 else fb
            a(f"s_waitcnt lgkmcnt({9 - 3*t})")
            a(f"v_mfma_f32_16x16x32_bf16 {d}, {wf[4*t:4*t+4]}, {ob[4*t:4*t+4]}, {d}")
        for k in range(0, 4, 2):
            a(f"v_pk_add_f32 {fa[k:k+2]}, {fa[k:k+2]}, {fb[k:k+2]}")
        tag(a, fa)
        a(f"s_mov_b64 exec, {sHalf}")
        a(f"buffer_store_dwordx4 {fa}, {p.vFPp}, {sWS}, 0 offen {hs}")
        a("s_mov_b64 exec, -1")
        stamp(p, "Fpub", waves)
    def finish(p, lab, waves):
        a = p.a
        if probe or stamps:
            a("s_waitcnt vmcnt(0)")
            stamp(p, "end", waves)
            a("s_waitcnt lgkmcnt(0)")
        if probe and p.stamps:
            pr = p.stamps[0][1]
            now = p.S(2)
            a(f"s_mov_b32 {sSpin}, 0")
            a.label(f"L_hold{lab}")
            a(f"s_memrealtime {now}")
            a("s_waitcnt lgkmcnt(0)")
            a(f"s_sub_u32 {st0}, {now[0]}, {pr[0]}")
            a(f"s_add_u32 {sSpin}, {sSpin}, 1")
            a(f"s_cmp_gt_u32 {sSpin}, 100000")
            a("s_cbranch_scc1 L_end")
            a(f"s_cmp_lt_u32 {st0}, 4000")
            a(f"s_cbranch_scc1 L_hold{lab}")
        if stamps:
            a(f"s_lshl_b32 {st0}, s2, 3")
            a(f"s_add_u32 {st0}, {st0}, {wv}")
            a(f"s_lshl_b32 {st0}, {st0}, 7")
            a(f"s_add_u32 {st0}, {st0}, {ST}")
            a("s_mov_b64 exec, 1")
            for i, r_ in p.stamps:
                a(f"v_mov_b32 {t0}, {r_[0]}")
                a(f"buffer_store_dword {t0}, off, {sWS}, {st0} offset:{4*i}")
                a("s_nop 1")
        a("s_endpgm")

    PL = mkpath(P0)
    a, S, V = PL.a, PL.S, PL.V
    sK, sV_, sS1, sWO, sW2 = [S(4) for _ in range(5)]
    sS1off, sS1step, sLdsW = S(), S(), S()
    a(f"s_lshl_b32 {st1}, {sKh}, 9")
    a(f"s_lshl_b32 {st2}, {wv}, 7")
    a(f"s_add_u32 {st1}, {st1}, {st2}")
    a(f"s_mul_i32 {st1}, {st1}, {sStride}")
    a(f"s_lshl_b32 {st2}, {sCb}, 7")
    a(f"s_add_u32 {sS1off}, {st1}, {st2}")
    a(f"s_lshl_b32 {sS1step}, {sStride}, 3")
    a(f"s_lshl_b32 {sLdsW}, {wv}, 15")
    vS1 = V(2)
    a(f"v_lshrrev_b32 {t0}, 3, {lane}")
    a(f"v_and_b32 {t1}, 7, {lane}")
    a(f"v_and_b32 {t2}, 2, {t0}")
    a(f"v_xor_b32 {t1}, {t1}, {t2}")
    a(f"v_lshlrev_b32 {t1}, 4, {t1}")
    a(f"v_mul_lo_u32 {t0}, {t0}, {sStride}")
    a(f"v_add_u32 {vS1[0]}, {t0}, {t1}")
    a(f"v_xor_b32 {t1}, 64, {t1}")
    a(f"v_add_u32 {vS1[1]}, {t0}, {t1}")
    if SP != 128:
        assert STREAM
        m = SP // 128; lg = m.bit_length() - 1
        if SP <= 1024:
            a(f"v_lshrrev_b32 {t0}, {3 + lg}, {lane}")
            a(f"v_and_b32 {t1}, {8*m - 1}, {lane}")
            a(f"v_lshlrev_b32 {t1}, 4, {t1}")
            a(f"v_mul_lo_u32 {t0}, {t0}, {sStride}")
            a(f"v_add_u32 {vS1[0]}, {t0}, {t1}")
            a(f"v_mov_b32 {vS1[1]}, {vS1[0]}")
            a(f"s_and_b32 {st0}, {sCb}, {m - 1}")
            a(f"s_lshl_b32 {st0}, {st0}, {9 - lg}")
            a(f"s_lshl_b32 {st1}, {sKh}, 9")
            a(f"s_add_u32 {st0}, {st0}, {st1}")
            a(f"s_lshl_b32 {st1}, {wv}, {7 - lg}")
            a(f"s_add_u32 {st0}, {st0}, {st1}")
            a(f"s_mul_i32 {st0}, {st0}, {sStride}")
            a(f"s_lshr_b32 {st1}, {sCb}, {lg}")
            a(f"s_lshl_b32 {st1}, {st1}, {7 + lg}")
            a(f"s_add_u32 {sS1off}, {st0}, {st1}")
            a(f"s_lshl_b32 {sS1step}, {sStride}, {3 - lg}")
        else:
            a(f"v_mov_b32 {vS1[0]}, {l16}")
            a(f"v_mov_b32 {vS1[1]}, {l16}")
            a(f"s_and_b32 {st0}, s2, 127")
            a(f"s_lshl_b32 {st0}, {st0}, 16")
            a(f"s_lshl_b32 {st1}, {wv}, 14")
            a(f"s_add_u32 {sS1off}, {st0}, {st1}")
            a(f"s_mov_b32 {sS1step}, 1024")
    a(f"s_lshl_b32 {sS1[2]}, {sStride}, 10")
    a("s_cmp_lt_u32 s2, 240")
    a(f"s_cselect_b32 {sS1[2]}, {sS1[2]}, 0")
    a(f"s_mov_b32 {sS1[3]}, 0x20000")
    if PRIO:
        a(f"s_setprio {PRIO}")
    a("s_cmp_lt_u32 s2, 128")
    a("s_waitcnt lgkmcnt(0)")
    a(f"s_cselect_b32 {sS1[0]}, s10, s16")
    a(f"s_cselect_b32 {sS1[1]}, s11, s17")
    a(f"s_and_b32 {sS1[1]}, {sS1[1]}, 0xffff")
    if ST0: stamp(PL, "karg", LW)
    big = []
    state = {"n": 0, "kv": False, "b2": False, "b5": False, "c0": None}
    sM = S(); vC = V(); vCr = V(); sTr = S(2); vTrc = V()
    if CT: a(f"v_mov_b32 {vC}, {L_C}")
    NS, NK, NVV, NW = 16, 48, 80, 95
    pos = {t: 8 + i for i, t in enumerate(KP.split())} if KP else None
    vVo = V()
    vK = V(4); vWo = V(); vW2 = V(); vV = V(128)
    sKV, sRot, sRot2, sWo, sW2o, sLdsI = S(), S(), S(), S(), S(), S()
    order = []
    si = ki = 0
    while si < 16:
        for _ in range(IL[0]):
            if si < 16: order.append(("S", si)); si += 1
        if si < 16:
            for _ in range(IL[1]):
                order.append(("K", ki)); ki += 1
    while ki < 16:
        order.append(("K", ki)); ki += 1
    order += [("V", i) for i in range(VG)] + [("K", i) for i in range(16, 32)] + [("V", i) for i in range(VG, 32)]
    order += [("W", i) for i in range(15)]
    assert len(order) == NW
    def win(n):
        d = D
        for n0, dn in SCH:
            if n >= n0: d = dn
        return d
    def issue(count=1, paced=True):
        for _ in range(count):
            n = state["n"]
            if n >= NW: return
            dd = win(n)
            if paced and n - dd >= 0:
                if CT and CT["slot"] <= n < CT["end"] and dd < CT["D"]:
                    assert state["b2"]
                    if (n - CT["slot"]) % CT["every"] == 0:
                        a(f"ds_read_b32 {vCr}, {vC}")
                        a("s_waitcnt lgkmcnt(0)")
                        a(f"v_readfirstlane_b32 {sM}, {vCr}")
                    a.wait_vm(big[n - CT["D"]])
                    a(f"s_cmp_gt_i32 {sM}, {n}")
                    a(f"s_cbranch_scc1 L_deep{n}")
                    a.wait_vm(big[n - dd])
                    a.label(f"L_deep{n}")
                else:
                    a.wait_vm(big[n - dd])
            if TR and n >= TR[0] and (n - TR[0]) % TR[1] == 0 and n < TR[0] + TR[1]*TR[2]:
                a(f"s_memrealtime {sTr}")
                a("s_waitcnt lgkmcnt(0)")
                a(f"v_writelane_b32 {vTrc}, {sTr[0]}, {(n - TR[0]) // TR[1]}")
            kind, p = order[n]
            if kind == "S":
                a(f"s_add_u32 m0, {sLdsW}, {16384 + 1024*p}")
                a.vmem(f"buffer_load_dwordx4 {vS1[p&1]}, {sS1}, {sS1off} offen {FL} lds", f"S{p}")
                if p < NS - 1:
                    a(f"s_add_u32 {sS1off}, {sS1off}, {sS1step}")
            elif kind in "KV":
                assert state["kv"]
                if KP:
                    a(f"s_xor_b32 {st0}, {sKV}, {hex(sum(((p >> i) & 1) << pos[f'p{i}'] for i in range(5)))}")
                elif KVM == 0:
                    a(f"s_add_u32 {st0}, {sRot}, {p}")
                    a(f"s_and_b32 {st0}, {st0}, 31")
                else:
                    a(f"s_add_u32 {st0}, {sRot2 if p & 1 else sRot}, {p >> 1}")
                    a(f"s_and_b32 {st0}, {st0}, 15")
                    if p & 1:
                        a(f"s_or_b32 {st0}, {st0}, 16")
                if not KP:
                    a(f"s_lshl_b32 {st0}, {st0}, 10")
                    a(f"s_add_u32 {st0}, {st0}, {sKV}")
                if kind == "K":
                    assert p < 16 or state["b2"]
                    a(f"s_add_u32 m0, {sLdsW}, {1024*p}")
                    a.vmem(f"buffer_load_dwordx4 {vK[p&3]}, {sK}, {st0} offen {FL} lds", f"K{p}")
                elif VL:
                    assert STREAM
                    a(f"s_add_u32 m0, {sLdsW}, {1024*p}")
                    a.vmem(f"buffer_load_dwordx4 {vK[p&3]}, {sV_}, {st0} offen {FL} lds", f"V{p}")
                else:
                    a.vmem(f"buffer_load_dwordx4 {vV[4*p:4*p+4]}, {vVo if KP else l16}, {sV_}, {st0} offen {FL}", f"V{p}")
            else:
                assert state["b5"]
                i = p
                if i < 7:
                    a(f"s_add_u32 {st0}, {sW2o}, {i*16*2048}")
                    a(f"s_add_u32 m0, {sLdsI}, {L_W + 32768 + i*4096}")
                    a.vmem(f"buffer_load_dwordx4 {vW2}, {sW2}, {st0} offen {FL} lds", f"W{i}")
                else:
                    a(f"s_add_u32 {st0}, {sWo}, {(i - 7)*2048}")
                    a(f"s_add_u32 m0, {sLdsI}, {L_W + (i - 7)*4096}")
                    a.vmem(f"buffer_load_dwordx4 {vWo}, {sWO}, {st0} offen {FL} lds", f"W{i}")
            big.append(f"{kind}{p}")
            state["n"] = n + 1
    def issue_until(n):
        issue(max(0, n - state["n"]))
    def land(tagname, extra=None):
        while tagname not in big:
            issue(1)
        idx = big.index(tagname)
        while state["n"] < NW:
            n = state["n"]
            dd = win(n)
            if n - dd > idx or (extra is not None and n - dd == idx): break
            issue(1)
        if extra:
            issue(extra, paced=False)
        a.wait_vm(tagname)
    issue(min(D, IL[0]))
    a(f"s_load_dword {sE}, s[28:29], {hex(EPO)}")
    srd(a, sK, 6, 1 << 25); srd(a, sV_, 8, 1 << 25); srd(a, sWO, 12, 1 << 23); srd(a, sW2, 20, 3584*2048)
    srd(a, sWS, 28, WS_SIZE)
    if AP:
        assert STREAM
        a(f"s_lshr_b32 {st0}, s2, 4")
        a(f"s_and_b32 {st0}, {st0}, 7")
        a(f"s_and_b32 {st1}, s2, 15")
        a(f"s_cmp_eq_u32 {st0}, {st1}")
        a(f"s_cselect_b32 {sK[0]}, s8, s6")
        a(f"s_cselect_b32 {sK[1]}, s9, s7")
        a(f"s_cselect_b32 {sV_[0]}, s6, s8")
        a(f"s_cselect_b32 {sV_[1]}, s7, s9")
        a(f"s_and_b32 {sK[1]}, {sK[1]}, 0xffff")
        a(f"s_and_b32 {sV_[1]}, {sV_[1]}, 0xffff")
    S.give(4, 28)
    common_consts(a)
    if KP:
        a(f"v_and_b32 {t3}, 1, {lj}")
        a(f"v_lshlrev_b32 {t3}, {pos['j0']}, {t3}")
        a(f"v_lshrrev_b32 {t2}, 1, {lj}")
        a(f"v_lshl_add_u32 {t3}, {t2}, {pos['j1']}, {t3}")
    a(f"v_and_b32 {t1}, 15, {lane}")
    a(f"v_lshlrev_b32 {t2}, 2, {lj}")
    a(f"v_xor_b32 {t1}, {t1}, {t2}")
    for p in range(4):
        a(f"v_xor_b32 {t2}, {p}, {t1}")
        a(f"v_lshlrev_b32 {t2}, 4, {t2}")
        if KP:
            a(f"v_add_u32 {vK[p]}, {t3}, {t2}")
        else:
            a(f"v_lshl_add_u32 {vK[p]}, {lj}, 8, {t2}")
    if KP:
        a(f"v_and_b32 {t2}, 0xf0, {l16}")
        a(f"v_add_u32 {vVo}, {t3}, {t2}")
        a(f"s_lshr_b32 {sKV}, s2, 3")
        a(f"s_lshl_b32 {sKV}, {sKV}, 20")
        def put(src, dstbit):
            reg, bit = {"s": ("s2", 0), "g": ("s2", 3), "v": (wv, 0)}[src[0]]
            a(f"s_bfe_u32 {st0}, {reg}, {hex(0x10000 + bit + int(src[1]))}")
            a(f"s_lshl_b32 {st0}, {st0}, {dstbit}")
            a(f"s_xor_b32 {sKV}, {sKV}, {st0}")
        for t_ in ("s0", "s1", "s2", "v0", "v1"):
            put(t_, pos[t_])
        for dst, src in RX:
            assert dst[0] == "p"
            put(src, pos[dst])
    else:
        a(f"s_lshl_b32 {sKV}, s2, 17")
        a(f"s_add_u32 {sKV}, {sKV}, {sLdsW}")
        a(f"s_lshr_b32 {st0}, s2, 3")
        if KVM == 0:
            a(f"s_lshl_b32 {sRot}, {wv}, 3")
            a(f"s_add_u32 {sRot}, {sRot}, {st0}")
        else:
            a(f"s_lshl_b32 {sRot}, {wv}, 2")
            a(f"s_add_u32 {sRot}, {sRot}, {st0}")
            a(f"s_add_u32 {sRot2}, {sRot}, 2")
    state["kv"] = True
    issue_until(D)
    if ST0: stamp(PL, "pre0", LW)
    issue(1)
    if ST0: stamp(PL, "S0landed", LW)
    a(f"v_and_b32 {t1}, 15, {lane}")
    a(f"v_lshlrev_b32 {t2}, 1, {lj}")
    a(f"v_xor_b32 {t1}, {t1}, {t2}")
    a(f"s_lshl_b32 {st0}, {wv}, 2")
    a(f"s_and_b32 {st0}, {st0}, 8")
    a(f"v_xor_b32 {t1}, {st0}, {t1}")
    a(f"v_lshlrev_b32 {t1}, 4, {t1}")
    a(f"v_lshl_add_u32 {vWo}, {lj}, 14, {t1}")
    a(f"v_lshl_add_u32 {vW2}, {lj}, 11, {t1}")
    a(f"s_lshl_b32 {st0}, {wv}, 5")
    a(f"s_lshl_b32 {st1}, {sHf}, 7")
    a(f"s_add_u32 {st0}, {st0}, {st1}")
    a(f"s_lshl_b32 {st0}, {st0}, 11")
    a(f"s_lshl_b32 {st1}, {sN}, 8")
    a(f"s_add_u32 {sWo}, {st0}, {st1}")
    a(f"s_mul_i32 {st0}, {sHf}, 112")
    a(f"s_lshl_b32 {st2}, {wv}, 2")
    a(f"s_add_u32 {st0}, {st0}, {st2}")
    a(f"s_lshl_b32 {st0}, {st0}, 11")
    a(f"s_add_u32 {sW2o}, {st0}, {st1}")
    a(f"s_lshl_b32 {sLdsI}, {wv}, 10")
    issue(1)
    final_addrs(PL)
    issue(1)
    vOw = V(); vPr = V()
    a(f"v_mul_u32_u24 {t0}, 144, {lj}")
    a(f"v_lshl_add_u32 {t0}, {lb}, 4, {t0}")
    a(f"s_mul_i32 {st0}, {wv}, 4608")
    a(f"s_add_u32 {st0}, {st0}, {L_OS}")
    a(f"v_add_u32 {vOw}, {st0}, {t0}")
    a(f"v_lshlrev_b32 {t0}, 7, {lj}")
    a(f"v_lshl_add_u32 {t0}, {lb}, 4, {t0}")
    a(f"s_lshl_b32 {st0}, {wv}, 11")
    a(f"s_add_u32 {st0}, {st0}, {L_P}")
    a(f"v_add_u32 {vPr}, {st0}, {t0}")
    sPlo, sPhi = S(), S()
    a(f"s_mov_b32 {sPlo}, 0x05040100")
    a(f"s_mov_b32 {sPhi}, 0x07060302")
    if ST0:
        land("S7"); stamp(PL, "S7landed", LW)
    land("S15")
    if ST0: stamp(PL, "S15landed", LW)
    a("s_waitcnt lgkmcnt(0)")
    make_tags(a)
    stamp(PL, "Slanded", LW)
    a("s_barrier")
    if DL:
        assert STREAM
        a(f"s_lshr_b32 {st0}, s2, 4")
        a(f"s_and_b32 {st0}, {st0}, 7")
        a(f"s_and_b32 {st1}, s2, 15")
        a(f"s_xor_b32 {st1}, {st1}, 8")
        a(f"s_cmp_eq_u32 {st0}, {st1}")
        a("s_cbranch_scc0 L_nodl")
        a(f"s_sleep {DL}")
        a.label("L_nodl")
    issue(N2)
    a("s_barrier")
    state["b2"] = True
    issue_until(GS)
    if CT: a.wait_vm(big[state["n"] - 1 - win(state["n"])])
    a("s_barrier")
    land("K31")
    stamp(PL, "Klanded", LW)
    issue(N4)
    a("s_barrier")
    issue(N5)
    if CT: a.wait_vm(big[state["n"] - 1 - win(state["n"])])
    stamp(PL, "LB5", LW)
    a("s_barrier")
    state["b5"] = True
    Pp = V(16); vt = V(32); acc = V(32)
    def perm_pair(G, ip):
        x0 = vV[4*(8*G + 2*ip):4*(8*G + 2*ip) + 4]
        x1 = vV[4*(8*G + 2*ip + 1):4*(8*G + 2*ip + 1) + 4]
        for e in range(8):
            a(f"v_perm_b32 {vt[4*e + ip]}, {x1[e>>1]}, {x0[e>>1]}, {sPhi if e & 1 else sPlo}")
    def pv(G):
        for e in range(8):
            c = "0" if G == 0 else str(acc[4*e:4*e+4])
            a(f"v_mfma_f32_16x16x32_bf16 {acc[4*e:4*e+4]}, {vt[4*e:4*e+4]}, {Pp[4*G:4*G+4]}, {c}")
    if not STREAM:
        for G in range(4):
            a(f"ds_read_b128 {Pp[4*G:4*G+4]}, {vPr} offset:{512*G}")
        for G in range(4):
            for ip in range(4):
                last = f"V{8*G + 2*ip + 1}"
                if last in big and state["n"] - big.index(last) > win(state["n"]) and state["n"] < NVV + win(state["n"]) - 1:
                    issue(1)
                if G == 3 and ip == 3:
                    land(last, TW)
                    stamp(PL, "Vlanded", LW)
                else:
                    land(last)
                perm_pair(G, ip)
            if G == 0:
                a("s_waitcnt lgkmcnt(0)")
            pv(G)
        a(f"s_mov_b64 exec, {sHalf}")
        for e in range(8):
            a(f"ds_write_b128 {vOw}, {acc[4*e:4*e+4]} offset:{576*e}")
        a("s_mov_b64 exec, -1")
        a("s_waitcnt lgkmcnt(0)")
    else:
        land("V31")
        stamp(PL, "Vlanded", LW)
    a("s_barrier")
    land("W6")
    stamp(PL, "W2landed", LW)
    a("s_barrier")
    issue(NW, paced=False)
    wf, ob, fa, fb = vV[0:16], vV[16:32], vV[32:36], vV[36:40]
    if not STREAM:
        ffn_part(PL, wf, ob, fa, fb)
    a("s_waitcnt vmcnt(0)")
    stamp(PL, "Wlanded", LW)
    a("s_barrier")
    if not STREAM:
        attn_part(PL, wf, ob, fa, fb, LW)
    if TR:
        a(f"s_lshl_b32 {st0}, s2, 2")
        a(f"s_add_u32 {st0}, {st0}, {wv}")
        a(f"s_lshl_b32 {st0}, {st0}, 8")
        a(f"s_add_u32 {st0}, {st0}, {ST + 0x80000}")
        a(f"v_lshlrev_b32 {t0}, 2, {lane}")
        a(f"buffer_store_dword {vTrc}, {t0}, {sWS}, {st0} offen")
    finish(PL, "L", LW)

    PC = mkpath(P0)
    a, S, V = PC.a, PC.S, PC.V
    a.label("L_compute")
    sX, sB1, sB2, sOUT = [S(4) for _ in range(4)]
    cw = S()
    a(f"s_sub_u32 {cw}, {wv}, 4")
    sXa, sXb = S(), S()
    vX = V()
    a(f"v_lshrrev_b32 {t0}, 5, {lane}")
    a(f"v_and_b32 {t1}, 31, {lane}")
    a(f"v_lshlrev_b32 {t1}, 4, {t1}")
    a(f"v_lshl_add_u32 {vX}, {t0}, 11, {t1}")
    a(f"s_lshl_b32 {st1}, {cw}, 12")
    a(f"s_lshl_b32 {st2}, {sKh}, 10")
    a(f"s_add_u32 {sXa}, {st1}, {st2}")
    a(f"s_xor_b32 {sXb}, {sXa}, 1024")
    vXw = V()
    a(f"s_mul_i32 {st0}, {cw}, {2*XNS}")
    a(f"s_add_u32 {st0}, {st0}, {L_XN}")
    a(f"v_mul_u32_u24 {t0}, {XNS}, {t0}")
    a(f"v_add3_u32 {vXw}, {t0}, {t1}, {st0}")
    a("s_waitcnt lgkmcnt(0)")
    srd(a, sX, 4, 16384)
    xr = V(16)
    if True:
        for c in range(4):
            a.vmem(f"buffer_load_dwordx4 {xr[4*c:4*c+4]}, {vX}, {sX}, {sXa if c < 2 else sXb} offen offset:{512*(c&1)}", "x")
    a(f"s_load_dword {sE}, s[28:29], {hex(EPO)}")
    if PF:
        pf = V(8)
        a(f"s_cmp_lg_u32 {cw}, {PF - 1}")
        a("s_cbranch_scc1 L_nopf")
        a("s_mov_b64 exec, 1")
        a(f"s_lshl_b32 {st0}, s2, 17")
        a(f"v_mov_b32 {t0}, {st0}")
        a(f"global_load_dword {pf[0]}, {t0}, s[6:7]")
        a(f"global_load_dword {pf[1]}, {t0}, s[8:9]")
        a(f"s_and_b32 {st0}, s2, 31")
        a(f"s_lshl_b32 {st1}, {st0}, 18")
        a(f"v_mov_b32 {t1}, {st1}")
        a(f"global_load_dword {pf[2]}, {t1}, s[12:13]")
        a(f"s_mul_i32 {st1}, {st0}, {112*2048}")
        a(f"v_mov_b32 {t2}, {st1}")
        a(f"global_load_dword {pf[3]}, {t2}, s[20:21]")
        a(f"s_lshl_b32 {st0}, s2, 7")
        a(f"s_add_u32 {st0}, {st0}, 0xc0000")
        a(f"v_mov_b32 {t0}, {st0}")
        a(f"global_load_dword {pf[4]}, {t0}, s[28:29]")
        a(f"v_add_u32 {t0}, 0x240000, {t0}")
        a(f"global_load_dword {pf[5]}, {t0}, s[28:29]")
        a("s_mov_b64 exec, -1")
        a.label("L_nopf")
    srd(a, sB1, 18, 7168); srd(a, sB2, 22, 2048); srd(a, sOUT, 24, 16384); srd(a, sWS, 28, WS_SIZE)
    S.give(4, 28)
    common_consts(a)
    vPeer = V(); ctv = V(); ctr = V()
    def ct_setup():
        a(f"s_and_b32 {st0}, s2, 0x38")
        a(f"v_bfe_u32 {t0}, {lane}, 3, 2")
        a(f"v_lshl_add_u32 {t0}, {t0}, 6, {lb}")
        a(f"v_add_u32 {t0}, {st0}, {t0}")
        a(f"v_subrev_u32 {t1}, 64, {t0}")
        a(f"v_cmp_gt_u32 vcc, 240, {t0}")
        a(f"v_cndmask_b32 {t0}, {t1}, {t0}, vcc")
        a(f"v_lshlrev_b32 {vPeer}, {CT['sh']}, {t0}")
        if CT.get("noself"):
            a(f"v_mov_b32 {t1}, {OOB}")
            if CT["noself"] == 1:
                a(f"v_cmp_eq_u32 vcc, s2, {t0}")
            else:
                a(f"s_and_b32 {st0}, s2, 7")
                a(f"v_cmp_eq_u32 vcc, {st0}, {lb}")
            a(f"v_cndmask_b32 {vPeer}, {vPeer}, {t1}, vcc")
        a(f"v_mov_b32 {t0}, {L_C}")
        a(f"v_mov_b32 {t1}, 0")
        a(f"ds_write_b32 {t0}, {t1}")
    def ct_send(c, lab):
        a(f"s_cmp_lg_u32 {cw}, 3")
        a(f"s_cbranch_scc1 L_cts{lab}{c}")
        a(f"s_lshl_b32 {st0}, s2, {CT['sh']}")
        a(f"s_add_u32 {st0}, {st0}, {TS + c*0x8000}")
        a(f"s_mov_b32 {st1}, {TS + c*0x8000}")
        a(f"v_mov_b32 {ctv}, {sE}")
        a("s_mov_b64 exec, 1")
        if not CT.get("nostore"):
            a(f"buffer_store_dword {ctv}, off, {sWS}, {st0} sc1")
        a(f"s_bfm_b64 exec, {CT.get('np', 32)}, 0")
        if not CT.get("noload"):
            a(f"buffer_load_dword {ctr}, {vPeer}, {sWS}, {st1} offen sc1")
        a("s_mov_b64 exec, -1")
        a.label(f"L_cts{lab}{c}")
    def ct_eval(c, lab):
        base, c1, k = CT["pts"][c]
        a(f"s_cmp_lg_u32 {cw}, 3")
        a(f"s_cbranch_scc1 L_cte{lab}{c}")
        a("s_waitcnt vmcnt(0)")
        a(f"v_cmp_eq_u32 vcc, {sE}, {ctr}")
        a(f"s_bcnt1_i32_b32 {st0}, vcc_lo")
        if stamps:
            a(f"s_mov_b32 {sSpin}, {st0}")
            count(PC, f"r{c}", [7])
        a(f"s_mul_i32 {st0}, {st0}, {k}")
        a(f"s_add_i32 {st0}, {st0}, {base*4 - c1*k}")
        a(f"s_ashr_i32 {st0}, {st0}, 2")
        a(f"v_mov_b32 {t0}, {L_C}")
        a(f"v_mov_b32 {t1}, {st0}")
        a(f"ds_write_b32 {t0}, {t1}")
        a.label(f"L_cte{lab}{c}")
    if STREAM:
        a("s_waitcnt lgkmcnt(0)")
        make_tags(a)
        if CT:
            ct_setup(); a("s_waitcnt lgkmcnt(0)")
        for bi in range(8):
            a("s_barrier")
            if CT:
                c = {0: 0, 2: 1, 3: 2, 4: 3}.get(bi)
                if c is not None and c < len(CT["pts"]):
                    ct_send(c, "s")
                    if bi: ct_eval(c, "s")
                if bi == 1: ct_eval(0, "s")
        a(f"s_mov_b32 {st1}, {OOB}")
        a("s_cmp_eq_u32 s2, 0")
        a(f"s_cselect_b32 {st0}, {EPO}, {st1}")
        a(f"v_mov_b32 {t0}, {sE}")
        a(f"buffer_store_dword {t0}, off, {sWS}, {st0}")
        finish(PC, "C0", CW)
        keep = (a.lines + ["L_end:", "s_endpgm"], list(stamp_names))
    sB, sG, sSp = S(), S(), S()
    a(f"s_lshr_b32 {sB}, s2, 5")
    a(f"s_bfe_u32 {sG}, s2, 0x20003")
    a(f"s_and_b32 {sSp}, s2, 7")
    tq = V(); th = V(); tl = V()
    a(f"v_and_b32 {tq}, 255, v0")
    a(f"v_lshrrev_b32 {th}, 5, {tq}")
    a(f"v_and_b32 {tl}, 31, {tq}")
    vOut = V(); xo = V(2); b2o = V(2); b1o = V(2)
    a(f"s_lshr_b32 {st0}, {sHf}, 2")
    a(f"s_lshl_b32 {st0}, {st0}, 5")
    a(f"s_lshl_b32 {st1}, {sN}, 8")
    a(f"s_add_u32 {st0}, {st0}, {st1}")
    a(f"v_and_b32 {t0}, 3, {lane}")
    a(f"v_lshl_add_u32 {t0}, {t0}, 3, {st0}")
    a(f"s_and_b32 {st1}, {sHf}, 3")
    a(f"s_lshl_b32 {st1}, {st1}, 12")
    a(f"v_bfe_u32 {t1}, {lane}, 2, 1")
    a(f"v_lshl_add_u32 {t1}, {t1}, 11, {st1}")
    a(f"v_add_u32 {vOut}, {t0}, {t1}")
    a.vmem(f"buffer_load_dwordx2 {xo}, {vOut}, {sX}, 0 offen", "xo")
    a.vmem(f"buffer_load_dwordx2 {b2o}, {t0}, {sB2}, 0 offen", "b2o")
    vGq = V(); vGh = V(); vGl = V()
    sGq = S(2); sGh = S(2)
    a(f"s_lshl_b32 {st0}, {sB}, 14")
    a(f"s_lshl_b32 {st1}, {sG}, 12")
    a(f"s_add_u32 {sGq[0]}, {st0}, {st1}")
    assert QP == 0
    a(f"s_add_u32 {sGq[1]}, {sGq[0]}, 131072")
    a(f"v_lshlrev_b32 {vGq}, 4, {tq}")
    a(f"s_mul_i32 {st0}, {sHf}, 448")
    a(f"s_add_u32 {sGh[0]}, {st0}, {HP}")
    a(f"s_add_u32 {sGh[1]}, {sGh[0]}, 114688")
    a(f"v_mul_u32_u24 {t1}, 14336, {th}")
    a(f"v_min_u32 {t2}, 27, {tl}")
    a(f"v_lshl_add_u32 {vGh}, {t2}, 4, {t1}")
    a(f"s_mul_i32 {st0}, {sHf}, 224")
    a(f"v_lshlrev_b32 {t2}, 3, {t2}")
    a.vmem(f"buffer_load_dwordx2 {b1o}, {t2}, {sB1}, {st0} offen", "b1o")
    S.give(sX); S.give(sB1); S.give(sB2)
    a(f"v_mul_u32_u24 {t0}, {QS}, {th}")
    a(f"v_lshl_add_u32 {t0}, {tl}, 3, {t0}")
    a(f"v_add_u32 {vGl}, {L_Q}, {t0}")
    mA = V.mark()
    f = V(32)
    a.wait_vm("x")
    if ST0: stamp(PC, "xlanded", CW)
    for i in range(16):
        unpack(a, f[2*i], f[2*i+1], xr[i])
    s4 = V(4)
    for k in range(4):
        a(f"v_add_f32 {s4[k]}, {f[k]}, {f[4+k]}")
    for i in range(8, 32):
        a(f"v_add_f32 {s4[i&3]}, {s4[i&3]}, {f[i]}")
    sa, sb = s4[0], s4[1]
    def sum4():
        a(f"v_add_f32 {s4[0]}, {s4[0]}, {s4[1]}")
        a(f"v_add_f32 {s4[2]}, {s4[2]}, {s4[3]}")
        a(f"v_add_f32 {s4[0]}, {s4[0]}, {s4[2]}")
        for k in (8, 4, 2, 1):
            ror(a, sa, k, "add")
        swap16(a, sa, t0, "add")
    sum4()
    mu = V(); d4 = V(4)
    a(f"v_mul_f32 {mu}, 0x3a800000, {sa}")
    for i in range(0, 32, 4):
        for k in range(4):
            a(f"v_sub_f32 {d4[k]}, {f[i+k]}, {mu}")
        for k in range(4):
            a(f"v_mul_f32 {s4[k]}, {d4[k]}, {d4[k]}" if i == 0 else f"v_fmac_f32 {s4[k]}, {d4[k]}, {d4[k]}")
    sum4()
    a(f"v_mul_f32 {sa}, 0x3a800000, {sa}")
    a(f"v_cvt_pk_bf16_f32 {t0}, {mu}, {sa}")
    unpack(a, mu, sa, t0)
    a(f"v_add_f32 {sa}, 0x3727c5ac, {sa}")
    a(f"v_cvt_pk_bf16_f32 {t0}, {sa}, {sa}")
    a(f"v_lshlrev_b32 {sa}, 16, {t0}")
    a(f"v_sqrt_f32 {sa}, {sa}")
    a(f"v_cvt_pk_bf16_f32 {t0}, {sa}, {sa}")
    a(f"v_lshlrev_b32 {sa}, 16, {t0}")
    a(f"v_rcp_f32 {sb}, {sa}")
    for i in range(8):
        a(f"v_sub_f32 {t0}, {f[2*i]}, {mu}")
        a(f"v_sub_f32 {t1}, {f[2*i+1]}, {mu}")
        a(f"v_cvt_pk_bf16_f32 {t0}, {t0}, {t1}")
        unpack(a, f[2*i], f[2*i+1], t0)
        for k in (2*i, 2*i+1):
            a(f"v_mul_f32 {t0}, {f[k]}, {sb}")
            a(f"v_fma_f32 {t1}, -{t0}, {sa}, {f[k]}")
            a(f"v_fma_f32 {f[k]}, {t1}, {sb}, {t0}")
        a(f"v_cvt_pk_bf16_f32 {xr[i]}, {f[2*i]}, {f[2*i+1]}")
    a(f"ds_write_b128 {vXw}, {xr[0:4]}")
    a(f"ds_write_b128 {vXw}, {xr[4:8]} offset:512")
    V.release(mA)
    sLdsC = S()
    a(f"s_lshl_b32 {sLdsC}, {cw}, 15")
    mB = V.mark()
    vXn = V(); vTr = V(4); vS1w = V(); vS1r = V(); vPub = V()
    a(f"v_mul_u32_u24 {t0}, {XNS}, {lb}")
    a(f"v_lshl_add_u32 {t0}, {lj}, 4, {t0}")
    a(f"s_lshl_b32 {st0}, {cw}, 8")
    a(f"s_add_u32 {st0}, {st0}, {L_XN}")
    a(f"v_add_u32 {vXn}, {st0}, {t0}")
    a(f"v_bfe_u32 {t0}, {lane}, 2, 2")
    a(f"v_lshl_add_u32 {t1}, {lj}, 3, {t0}")
    a(f"v_lshlrev_b32 {t1}, 7, {t1}")
    a(f"v_and_b32 {t2}, 1, {lane}")
    a(f"v_lshl_add_u32 {t1}, {t2}, 3, {t1}")
    a(f"s_add_u32 {st0}, {sLdsC}, 16384")
    a(f"v_add_u32 {t1}, {st0}, {t1}")
    a(f"v_and_b32 {t0}, 2, {t0}")
    a(f"v_and_b32 {t2}, 1, {lj}")
    a(f"v_lshl_or_b32 {t0}, {t2}, 2, {t0}")
    a(f"v_bfe_u32 {t2}, {lane}, 1, 1")
    a(f"v_or_b32 {t0}, {t0}, {t2}")
    for ct in range(4):
        a(f"v_xor_b32 {t2}, {2*ct}, {t0}")
        a(f"v_lshl_add_u32 {vTr[ct]}, {t2}, 4, {t1}")
    a(f"v_mul_u32_u24 {t0}, {S1R}, {lb}")
    a(f"v_lshl_add_u32 {t0}, {lj}, 4, {t0}")
    a(f"s_mul_i32 {st0}, {cw}, {S1W}")
    a(f"s_add_u32 {st0}, {st0}, {L_S1}")
    a(f"v_add_u32 {vS1w}, {st0}, {t0}")
    a(f"s_lshl_b32 {st0}, {cw}, 2")
    a(f"v_add_u32 {t3}, {st0}, {lj}")
    a(f"v_mul_u32_u24 {t0}, {S1R}, {t3}")
    a(f"v_and_b32 {t1}, 15, {lane}")
    a(f"v_lshl_add_u32 {t0}, {t1}, 4, {t0}")
    a(f"v_add_u32 {vS1r}, {L_S1}, {t0}")
    a(f"s_lshl_b32 {st1}, {sStride}, 1")
    a(f"v_mul_lo_u32 {t2}, {t3}, {st1}")
    a(f"v_lshl_add_u32 {vPub}, {t1}, 4, {t2}")
    sPub = S()
    a("s_cmp_lt_u32 s2, 128")
    a(f"s_cselect_b32 {sPub}, {QP}, {HP}")
    a(f"s_lshl_b32 {st1}, {sStride}, 4")
    a(f"s_mul_i32 {st1}, {st1}, {sKh}")
    a(f"s_add_u32 {sPub}, {sPub}, {st1}")
    a(f"s_lshl_b32 {st1}, {sCb}, 8")
    a(f"s_add_u32 {sPub}, {sPub}, {st1}")
    a("s_cmp_lt_u32 s2, 240")
    a(f"s_cselect_b32 {sPub}, {sPub}, {OOB}")
    a("s_waitcnt lgkmcnt(0)")
    make_tags(a)
    stamp(PC, "LNdone", CW)
    a("s_barrier")
    xnb = V(16); wt = V(64); acc1 = V(16)
    for t in range(4):
        a(f"ds_read_b128 {xnb[4*t:4*t+4]}, {vXn} offset:{64*t}")
        for ct in range(4):
            for hf in range(2):
                o = (t*4 + ct)*4 + hf*2
                a(f"ds_read_b64_tr_b16 {wt[o:o+2]}, {vTr[ct]} offset:{t*4096 + hf*512}")
        if t >= 1:
            a("s_waitcnt lgkmcnt(9)")
            for ct in range(4):
                o = ((t-1)*4 + ct)*4
                c = "0" if t == 1 else str(acc1[4*ct:4*ct+4])
                a(f"v_mfma_f32_16x16x32_bf16 {acc1[4*ct:4*ct+4]}, {wt[o:o+4]}, {xnb[4*(t-1):4*t]}, {c}")
    a("s_waitcnt lgkmcnt(0)")
    for ct in range(4):
        a(f"v_mfma_f32_16x16x32_bf16 {acc1[4*ct:4*ct+4]}, {wt[(12+ct)*4:(12+ct)*4+4]}, {xnb[12:16]}, {acc1[4*ct:4*ct+4]}")
    a(f"s_mov_b64 exec, {sHalf}")
    for ct in range(4):
        a(f"ds_write_b128 {vS1w}, {acc1[4*ct:4*ct+4]} offset:{64*ct}")
    a("s_mov_b64 exec, -1")
    a("s_waitcnt lgkmcnt(0)")
    a("s_barrier")
    a(f"s_cmp_ge_u32 {cw}, 2")
    a("s_cbranch_scc1 L_nopub1")
    for w_ in range(4):
        a(f"ds_read_b128 {wt[4*w_:4*w_+4]}, {vS1r} offset:{w_*S1W}")
    a("s_waitcnt lgkmcnt(0)")
    for k in range(0, 4, 2):
        a(f"v_pk_add_f32 {wt[k:k+2]}, {wt[k:k+2]}, {wt[4+k:6+k]}")
        a(f"v_pk_add_f32 {wt[8+k:10+k]}, {wt[8+k:10+k]}, {wt[12+k:14+k]}")
    for k in range(0, 4, 2):
        a(f"v_pk_add_f32 {wt[k:k+2]}, {wt[k:k+2]}, {wt[8+k:10+k]}")
    tag(a, wt[0:4])
    a(f"buffer_store_dwordx4 {wt[0:4]}, {vPub}, {sWS}, {sPub} offen {hs}")
    stamp(PC, "pub1", [4, 5])
    a.label("L_nopub1")
    V.release(mB)
    final_addrs(PC)
    vOPp = V(); vOPg = V(); vOr = V(); vFr = V()
    a(f"s_lshl_b32 {st0}, {sG}, 18")
    a(f"s_lshl_b32 {st1}, {sB}, 12")
    a(f"s_add_u32 {st0}, {st0}, {st1}")
    a(f"s_lshl_b32 {st1}, {sSp}, 9")
    a(f"s_add_u32 {st0}, {st0}, {st1}")
    a(f"s_add_u32 {st0}, {st0}, {OP}")
    a(f"v_lshlrev_b32 {t0}, 15, {th}")
    a(f"v_lshl_add_u32 {t0}, {tl}, 4, {t0}")
    a(f"v_add_u32 {vOPp}, {st0}, {t0}")
    a(f"s_lshl_b32 {st0}, {sHf}, 15")
    a(f"s_add_u32 {st0}, {st0}, {OP}")
    a(f"v_lshl_add_u32 {t0}, {th}, 12, {st0}")
    a(f"v_lshl_add_u32 {vOPg}, {tl}, 4, {t0}")
    a(f"v_mul_u32_u24 {t0}, 144, {tl}")
    a(f"v_lshl_add_u32 {t0}, {th}, 4, {t0}")
    a(f"v_add_u32 {vOr}, {L_OS}, {t0}")
    a(f"v_lshlrev_b32 {t0}, 4, {th}")
    a(f"v_add_u32 {vFr}, {L_F}, {t0}")
    mC = V.mark()
    vKr = V(4); vPw = V(); vMLw = V()
    a(f"v_and_b32 {t0}, 15, {lane}")
    a(f"v_and_b32 {t1}, 3, {lane}")
    a(f"v_lshlrev_b32 {t1}, 10, {t1}")
    a(f"v_bfe_u32 {t2}, {lane}, 2, 2")
    a(f"v_lshl_add_u32 {t1}, {t2}, 8, {t1}")
    a(f"v_add_u32 {t1}, {sLdsC}, {t1}")
    a(f"v_xor_b32 {t0}, {t0}, {lj}")
    for t in range(4):
        a(f"v_xor_b32 {t2}, {4*t}, {t0}")
        a(f"v_lshl_add_u32 {vKr[t]}, {t2}, 4, {t1}")
    a(f"v_lshlrev_b32 {t0}, 7, {lj}")
    a(f"v_lshl_add_u32 {t0}, {lb}, 4, {t0}")
    a(f"v_bfe_u32 {t1}, {lane}, 3, 1")
    a(f"v_lshl_add_u32 {t0}, {t1}, 10, {t0}")
    a(f"s_lshl_b32 {st0}, {cw}, 11")
    a(f"s_add_u32 {st0}, {st0}, {L_P}")
    a(f"v_add_u32 {vPw}, {st0}, {t0}")
    a(f"s_lshl_b32 {st0}, {cw}, 3")
    a(f"s_add_u32 {st0}, {st0}, {L_ML}")
    a(f"v_lshl_add_u32 {vMLw}, {lb}, 5, {st0}")
    qa = V(16); qb = V(16)
    for i in range(16):
        a(f"v_mov_b32 {qa[i]}, 0")
        a(f"v_mov_b32 {qb[i]}, 0")
    a("s_barrier")
    stamp(PC, "B3", CW)
    kt = V(64); sc = V(16)
    graw, gg = kt[0:16], kt[16:32]
    gl = [f"buffer_load_dwordx4 {graw[0:4]}, {vGq}, {sWS}, {sGq[0]} offen sc1",
          f"buffer_load_dwordx4 {graw[4:8]}, {vGq}, {sWS}, {sGq[1]} offen sc1",
          f"buffer_load_dwordx4 {graw[8:12]}, {vGh}, {sWS}, {sGh[0]} offen sc1",
          f"buffer_load_dwordx4 {graw[12:16]}, {vGh}, {sWS}, {sGh[1]} offen sc1"]
    for x in gl:
        a(x)
    poll(a, "g", gl, gg, graw, GSLEEP)
    stamp(PC, "gok", CW); count(PC, "g", CW)
    for o in (0, 8):
        a(f"v_pk_add_f32 {gg[o:o+2]}, {gg[o:o+2]}, {gg[o+4:o+6]}")
        a(f"v_pk_add_f32 {gg[o+2:o+4]}, {gg[o+2:o+4]}, {gg[o+6:o+8]}")
        a(f"v_cvt_pk_bf16_f32 {gg[o+4]}, {gg[o]}, {gg[o+1]}")
        a(f"v_cvt_pk_bf16_f32 {gg[o+5]}, {gg[o+2]}, {gg[o+3]}")
    a(f"ds_write_b64 {vGl}, {gg[4:6]}")
    g0 = gg[8:12]
    for k in range(2):
        unpack(a, g0[0], g0[1], gg[12+k])
        unpack(a, g0[2], g0[3], b1o[k])
        a(f"v_add_f32 {g0[0]}, {g0[0]}, {g0[2]}")
        a(f"v_add_f32 {g0[1]}, {g0[1]}, {g0[3]}")
        a(f"v_cvt_pk_bf16_f32 {t0}, {g0[0]}, {g0[1]}")
        unpack(a, g0[0], g0[1], t0)
        a(f"v_max_f32 {g0[0]}, 0, {g0[0]}")
        a(f"v_max_f32 {g0[1]}, 0, {g0[1]}")
        a(f"v_mul_f32 {g0[0]}, {g0[0]}, {g0[0]}")
        a(f"v_mul_f32 {g0[1]}, {g0[1]}, {g0[1]}")
        a(f"v_cvt_pk_bf16_f32 {gg[12+k]}, {g0[0]}, {g0[1]}")
    a(f"ds_write_b64 {vGl}, {gg[12:14]} offset:{L_H - L_Q}")
    a("s_waitcnt lgkmcnt(0)")
    a("s_barrier")
    stamp(PC, "B4", CW)
    a(f"s_mov_b64 exec, {sHalf}")
    for t in range(4):
        a(f"ds_read_b128 {qa[4*t:4*t+4]}, {PC.vQr} offset:{64*t}")
    a(f"s_not_b64 exec, exec")
    for t in range(4):
        a(f"ds_read_b128 {qb[4*t:4*t+4]}, {PC.vQr} offset:{64*t}")
    a("s_mov_b64 exec, -1")
    def kreads(bt):
        for T2 in range(2):
            for t in range(4):
                o = (bt & 1)*32 + (T2*4 + t)*4
                a(f"ds_read_b128 {kt[o:o+4]}, {vKr[t]} offset:{(bt*2 + T2)*4096}")
    def kmm(bt):
        q = qa if bt < 2 else qb
        for t in range(4):
            for T2 in range(2):
                T = (bt & 1)*2 + T2
                o = (bt & 1)*32 + (T2*4 + t)*4
                c = "0" if (t == 0 and bt < 2) else str(sc[4*T:4*T+4])
                a(f"v_mfma_f32_16x16x32_bf16 {sc[4*T:4*T+4]}, {kt[o:o+4]}, {q[4*t:4*t+4]}, {c}")
    kreads(0)
    a("s_waitcnt lgkmcnt(7)")
    kreads(1)
    for bt in range(4):
        a(f"s_waitcnt lgkmcnt({8 if bt < 3 else 0})")
        kmm(bt)
        if bt + 2 < 4:
            a("s_nop 7")
            kreads(bt + 2)
    for i in range(0, 16, 2):
        a(f"v_cvt_pk_bf16_f32 {t0}, {sc[i]}, {sc[i+1]}")
        unpack(a, sc[i], sc[i+1], t0)
        a(f"v_mul_f32 {sc[i]}, {hex(SCALE)}, {sc[i]}")
        a(f"v_mul_f32 {sc[i+1]}, {hex(SCALE)}, {sc[i+1]}")
        a(f"v_cvt_pk_bf16_f32 {t0}, {sc[i]}, {sc[i+1]}")
        unpack(a, sc[i], sc[i+1], t0)
    ml = V(2)
    mw, lw = ml[0], ml[1]
    a(f"v_max3_f32 {mw}, {sc[0]}, {sc[1]}, {sc[2]}")
    for i in range(3, 15, 2):
        a(f"v_max3_f32 {mw}, {mw}, {sc[i]}, {sc[i+1]}")
    a(f"v_max_f32 {mw}, {mw}, {sc[15]}")
    ror(a, mw, 8, "max"); swap16(a, mw, t0, "max"); swap32(a, mw, t0, "max")
    sL2E = S()
    a(f"s_mov_b32 {sL2E}, {hex(LOG2E)}")
    for i in range(16):
        a(f"v_sub_f32 {sc[i]}, {sc[i]}, {mw}")
    for i in range(16):
        a(f"v_mul_f32 {sc[i]}, {sL2E}, {sc[i]}")
    for i in range(16):
        a(f"v_exp_f32 {sc[i]}, {sc[i]}")
    pp = kt[0:8]
    for i in range(8):
        a(f"v_cvt_pk_bf16_f32 {pp[i]}, {sc[2*i]}, {sc[2*i+1]}")
    a(f"ds_write_b128 {vPw}, {pp[0:4]}")
    a(f"ds_write_b128 {vPw}, {pp[4:8]} offset:512")
    for i in range(0, 8, 2):
        a(f"v_pk_add_f32 {sc[i:i+2]}, {sc[i:i+2]}, {sc[8+i:10+i]}")
    for i in range(0, 4, 2):
        a(f"v_pk_add_f32 {sc[i:i+2]}, {sc[i:i+2]}, {sc[4+i:6+i]}")
    a(f"v_pk_add_f32 {sc[0:2]}, {sc[0:2]}, {sc[2:4]}")
    a(f"v_add_f32 {lw}, {sc[0]}, {sc[1]}")
    ror(a, lw, 8, "add"); swap16(a, lw, t0, "add"); swap32(a, lw, t0, "add")
    a("s_mov_b64 exec, 0xff")
    a(f"ds_write_b64 {vMLw}, {ml}")
    a("s_mov_b64 exec, -1")
    a("s_waitcnt lgkmcnt(0)")
    stamp(PC, "QKdone", CW)
    a("s_barrier")
    a(f"s_cmp_lg_u32 {cw}, 3")
    a("s_cbranch_scc1 L_noml")
    m8 = kt[0:8]; e4 = kt[8:12]; mlg = kt[12:14]; vTml = kt[14:16]; tm = kt[16:18]; mlr = kt[18:20]; mu_ = kt[20:22]
    l8 = kt[22]
    a(f"v_lshlrev_b32 {t0}, 5, {lb}")
    a(f"v_add_u32 {t0}, {L_ML}, {t0}")
    a(f"ds_read_b128 {m8[0:4]}, {t0}")
    a(f"ds_read_b128 {m8[4:8]}, {t0} offset:16")
    a(f"v_and_b32 {t1}, 1, {lane}")
    a(f"v_cmp_eq_u32 vcc, 0, {t1}")
    for k in range(2):
        a(f"v_mov_b32 {t1}, {sT[k]}")
        a(f"v_mov_b32 {t2}, {sT[2+k]}")
        a(f"v_cndmask_b32 {vTml[k]}, {t2}, {t1}, vcc")
    sML = S()
    a(f"s_lshl_b32 {sML}, s2, 6")
    a(f"s_add_u32 {sML}, {sML}, {ML}")
    a(f"v_lshlrev_b32 {l8}, 3, {lane}")
    a("s_waitcnt lgkmcnt(0)")
    a(f"v_max3_f32 {mlg[0]}, {m8[0]}, {m8[2]}, {m8[4]}")
    a(f"v_max_f32 {mlg[0]}, {mlg[0]}, {m8[6]}")
    def exps(M):
        for k in range(4):
            a(f"v_sub_f32 {e4[k]}, {m8[2*k]}, {M}")
        for k in range(4):
            a(f"v_mul_f32 {e4[k]}, {sL2E}, {e4[k]}")
        for k in range(4):
            a(f"v_exp_f32 {e4[k]}, {e4[k]}")
    exps(mlg[0])
    a(f"v_mul_f32 {mlg[1]}, {e4[0]}, {m8[1]}")
    for k in range(1, 4):
        a(f"v_fmac_f32 {mlg[1]}, {e4[k]}, {m8[2*k+1]}")
    for k in range(2):
        a(f"v_bfi_b32 {tm[k]}, {vFF}, {vTml[k]}, {mlg[k]}")
    a("s_mov_b64 exec, 0xff")
    a(f"buffer_store_dwordx2 {tm}, {l8}, {sWS}, {sML} offen {hs}")
    a("s_mov_b64 exec, -1")
    stamp(PC, "MLpub", [7])
    a(f"s_and_b32 {sML}, {sML}, 0xfffffe00")
    a(f"s_mov_b32 {sSpin}, 0")
    a.label("L_ml_again")
    a("s_sleep 16")
    a(f"buffer_load_dwordx2 {mlr}, {l8}, {sWS}, {sML} offen sc1")
    a("s_waitcnt vmcnt(0)")
    for k in range(2):
        a(f"v_xor_b32 {mu_[k]}, {vTml[k]}, {mlr[k]}")
    a(f"v_or_b32 {t0}, {mu_[0]}, {mu_[1]}")
    a(f"v_and_b32 {t0}, {vFF}, {t0}")
    a(f"v_cmp_ne_u32 vcc, 0, {t0}")
    a("s_cbranch_vccz L_ml_ok")
    a(f"s_add_u32 {sSpin}, {sSpin}, 1")
    a(f"s_cmp_le_u32 {sSpin}, {SPIN_LIMIT}")
    a("s_cbranch_scc1 L_ml_again")
    a.label("L_ml_ok")
    a(f"v_mov_b32 {t1}, {mu_[0]}")
    ror(a, t1, 8, "max"); swap16(a, t1, t0, "max"); swap32(a, t1, t0, "max")
    a(f"v_sub_f32 {t2}, {mu_[0]}, {t1}")
    a(f"v_mul_f32 {t2}, {sL2E}, {t2}")
    a(f"v_exp_f32 {t2}, {t2}")
    exps(t1)
    a(f"v_mul_f32 {t2}, {t2}, {mu_[1]}")
    ror(a, t2, 8, "add"); swap16(a, t2, t0, "add"); swap32(a, t2, t0, "add")
    a(f"v_rcp_f32 {t2}, {t2}")
    a(f"v_lshlrev_b32 {t0}, 4, {lb}")
    a(f"v_add_u32 {t0}, {L_F}, {t0}")
    for k in range(4):
        a(f"v_mul_f32 {e4[k]}, {e4[k]}, {t2}")
    a("s_mov_b64 exec, 0xff")
    a(f"ds_write_b128 {t0}, {e4}")
    a("s_mov_b64 exec, -1")
    a("s_waitcnt lgkmcnt(0)")
    stamp(PC, "MLok", [7]); count(PC, "ml", [7])
    a.label("L_noml")
    V.release(mC)
    xs = V(8)
    unpack(a, xs[0], xs[1], xo[0]); unpack(a, xs[2], xs[3], xo[1])
    unpack(a, xs[4], xs[5], b2o[0]); unpack(a, xs[6], xs[7], b2o[1])
    for k in range(4):
        a(f"v_add_f32 {xs[k]}, {xs[k]}, {xs[4+k]}")
    sFPr = S()
    a(f"s_lshl_b32 {sFPr}, s2, 12")
    a(f"s_add_u32 {sFPr}, {sFPr}, {FP}")
    a("s_barrier")
    stamp(PC, "B6", CW)
    g = V(16); fc = V(4)
    a(f"ds_read_b128 {fc}, {vFr}")
    for w_ in range(4):
        a(f"ds_read_b128 {g[4*w_:4*w_+4]}, {vOr} offset:{4608*w_}")
    for w_ in range(4):
        a(f"s_waitcnt lgkmcnt({3 - w_})")
        for k in range(4):
            a(f"v_mul_f32 {g[k]}, {g[k]}, {fc[0]}" if w_ == 0 else f"v_fmac_f32 {g[k]}, {g[4*w_+k]}, {fc[w_]}")
    tag(a, g[0:4])
    a(f"buffer_store_dwordx4 {g[0:4]}, {vOPp}, {sWS}, 0 offen {hs}")
    stamp(PC, "Opub", CW)
    a("s_barrier")
    stamp(PC, "B6b", CW)
    oraw = V(32); ou = V(32)
    ol = [f"buffer_load_dwordx4 {oraw[4*s_:4*s_+4]}, {vOPg}, {sWS}, 0 offen offset:{512*s_} sc1" for s_ in range(8)]
    for x in ol:
        a(x)
    wf, ob, fa, fb = V(16), V(16), V(4), V(4)
    ffn_part(PC, wf, ob, fa, fb)
    poll(a, "o", ol, ou, oraw)
    stamp(PC, "Ook", CW); count(PC, "o", CW)
    for step in (16, 8, 4):
        for k in range(0, step, 2):
            a(f"v_pk_add_f32 {ou[k:k+2]}, {ou[k:k+2]}, {ou[step+k:step+k+2]}")
    a(f"v_cvt_pk_bf16_f32 {ou[0]}, {ou[0]}, {ou[1]}")
    a(f"v_cvt_pk_bf16_f32 {ou[1]}, {ou[2]}, {ou[3]}")
    a(f"ds_write_b64 {vGl}, {ou[0:2]} offset:{L_O - L_Q}")
    a("s_waitcnt lgkmcnt(0)")
    a("s_barrier")
    stamp(PC, "B7", CW)
    attn_part(PC, wf, ob, fa, fb, CW)
    a(f"s_cmp_lg_u32 {cw}, 0")
    a("s_cbranch_scc1 L_fin")
    rraw, r = oraw[0:16], ou[0:16]
    rl = [f"buffer_load_dwordx4 {rraw[4*k:4*k+4]}, {l16}, {sWS}, {sFPr} offen offset:{1024*k} sc1" for k in range(4)]
    for x in rl:
        a(x)
    poll(a, "r", rl, r, rraw)
    stamp(PC, "Rok", [4]); count(PC, "r", [4])
    for step in (8, 4):
        for k in range(0, step, 2):
            a(f"v_pk_add_f32 {r[k:k+2]}, {r[k:k+2]}, {r[step+k:step+k+2]}")
    for k in range(4):
        ror(a, r[k], 8, "add")
    for k in range(4):
        a(f"v_mov_b32 {r[4+k]}, {r[k]}")
    for k in range(4):
        a(f"v_permlane16_swap_b32 {r[k]}, {r[4+k]}")
    for k in range(4):
        a(f"v_add_f32 {r[k]}, {r[k]}, {r[4+k]}")
    for k in range(4):
        a(f"v_mov_b32 {r[4+k]}, {r[k]}")
    for k in range(4):
        a(f"v_permlane32_swap_b32 {r[k]}, {r[4+k]}")
    for k in range(4):
        a(f"v_add_f32 {r[k]}, {r[k]}, {r[4+k]}")
    for k in range(4):
        a(f"v_add_f32 {r[k]}, {r[k]}, {xs[k]}")
    a(f"v_cvt_pk_bf16_f32 {r[0]}, {r[0]}, {r[1]}")
    a(f"v_cvt_pk_bf16_f32 {r[1]}, {r[2]}, {r[3]}")
    a("s_mov_b64 exec, 0xff")
    a(f"buffer_store_dwordx2 {r[0:2]}, {vOut}, {sOUT}, 0 offen")
    a(f"s_mov_b32 {st1}, {OOB}")
    a("s_cmp_eq_u32 s2, 0")
    a(f"s_cselect_b32 {st0}, {EPO}, {st1}")
    a(f"v_mov_b32 {t0}, {sE}")
    a("s_mov_b64 exec, 1")
    a(f"buffer_store_dword {t0}, off, {sWS}, {st0}")
    a("s_mov_b64 exec, -1")
    a.label("L_fin")
    finish(PC, "C", CW)
    a.label("L_end")
    a("s_endpgm")

    if STREAM:
        PC.a.lines, stamp_names = keep
    body = pad(P0.a.lines + PL.a.lines + PC.a.lines)
    hdr = open("cdna_kernels/" + NAME + ".s.ref").read().split("; Override launch")[0]
    nv = (max(PL.V.high, PC.V.high) + 7) // 8 * 8
    out = hdr + f"; @launch grid=(256,1,1) block=(512,1,1) lds={LDS_BYTES}\n"
    out += '.amdgcn_target "amdgcn-amd-amdhsa--gfx950"\n.text\n'
    out += f".globl {KNAME}\n.p2align 8\n.type {KNAME},@function\n"
    for ln in body:
        out += (ln if ln.endswith(":") else "    " + ln) + "\n"
    out += '.section .rodata,"a"\n.p2align 6\n'
    out += f".amdhsa_kernel {KNAME}\n"
    out += f"  .amdhsa_next_free_vgpr {nv}\n  .amdhsa_next_free_sgpr 102\n  .amdhsa_accum_offset {nv}\n"
    out += "  .amdhsa_group_segment_fixed_size 0\n  .amdhsa_kernarg_size 104\n  .amdhsa_user_sgpr_count 2\n"
    out += "  .amdhsa_user_sgpr_kernarg_segment_ptr 1\n  .amdhsa_system_sgpr_workgroup_id_x 1\n"
    out += "  .amdhsa_float_denorm_mode_32 3\n"
    out += ".end_amdhsa_kernel\n"
    assert len(stamp_names) <= 32
    return out, stamp_names

if __name__ == "__main__":
    import json
    kw = eval("dict(" + (sys.argv[2] if len(sys.argv) > 2 else "") + ")")
    txt, st = gen(**kw)
    open(sys.argv[1], "w").write(txt)
    json.dump(st, open(sys.argv[1] + ".json", "w"))
```

```python
import sys, copy
from asmlib import *

NAME = "parallel_sum__gqa_block_cached__dense_activation_squared_relu__decode"
KNAME = NAME + "_kernel"

QP, HP, ML, OP, FP, ST = 0x0, 0x40000, 0x80000, 0x100000, 0x200000, 0x400000
EPO = 0x90000
TS = 0xa0000
WS_SIZE = 0x800000
OOB = 0x10000000
L_W = 0
L_OS = 0x10000
L_XN = 0x20000
XNS = 1024 + 16
S1R = 272
S1W = 8 * S1R
L_S1 = L_XN + 8 * XNS
QS = 256 + 16
L_Q = L_S1 + 4 * S1W
L_H = L_Q + 8 * QS
L_O = L_H + 8 * QS
L_ML = L_O + 8 * QS
L_F = L_ML + 256
L_P = L_F + 128
L_C = L_P + 8192
LDS_BYTES = 163840
assert L_C + 16 <= LDS_BYTES
LOG2E = 0x3fb8aa3b
SCALE = 0x3db504f3
SPIN_LIMIT = 100000

def gen(D=6, FL="nt", stamps=False, probe=None, N2=3, GS=40, N5=9, KVM=0, TW=2, STREAM=False, PRIO=0,
        GSLEEP=8, KP=None, RX=(), PW=None, AP=False, DL=0, VL=False, TR=None, PF=0, CT=None, SP=128, IL=(16, 0), VG=0, SCH=(), N4=0, S1M=0, ST0=False):
    hs = "sc1"
    stamp_names = []
    class Path:
        pass
    def mkpath(parent=None):
        p = Path()
        p.a = Asm()
        p.S = copy.deepcopy(parent.S) if parent else Alloc("s", 30, 102)
        p.V = copy.deepcopy(parent.V) if parent else Alloc("v", 1, 256)
        p.stamps = list(parent.stamps) if parent else []
        return p
    def stamp(p, name, waves):
        if stamps or name == probe:
            names = [n for n, _ in stamp_names]
            if name in names:
                i = names.index(name)
                stamp_names[i] = (name, sorted(set(stamp_names[i][1]) | set(waves)))
            else:
                i = len(stamp_names); stamp_names.append((name, list(waves)))
            r = p.S(2)
            p.stamps.append((i, r))
            p.a(f"s_memrealtime {r}")
    def count(p, name, waves):
        if stamps:
            i = len(stamp_names); stamp_names.append(("#" + name, list(waves)))
            r = p.S(1)
            p.stamps.append((i, r))
            p.a(f"s_mov_b32 {r}, {sSpin}")
    LW, CW, AW = range(4), range(4, 8), range(8)

    P0 = mkpath()
    a, S, V = P0.a, P0.S, P0.V
    a.label(KNAME)
    stamp(P0, "start", AW)
    a("s_cmp_ge_u32 s2, 256")
    a("s_cbranch_scc1 L_end")
    a("s_load_dwordx16 s[4:19], s[0:1], 0")
    a("s_load_dwordx8 s[20:27], s[0:1], 64")
    a("s_load_dwordx2 s[28:29], s[0:1], 96")
    lane = V(); t0 = V(); t1 = V(); t2 = V(); t3 = V(); l16 = V(); lj = V(); lb = V(); vFF = V()
    wv = "s3"
    st0, st1, st2 = S(), S(), S()
    sWS = S(4); sT = S(4); sE = S(); sHalf = S(2); sHf = S(); sN = S(); sStride = S(); sKh = S(); sCb = S(); sSpin = S()
    a(f"v_lshrrev_b32 {t0}, 6, v0")
    a(f"v_and_b32 {lane}, 63, v0")
    a(f"v_readfirstlane_b32 {wv}, {t0}")
    a(f"s_and_b32 {sKh}, s2, 1")
    a(f"s_mov_b32 {sStride}, 7168")
    a("s_cmp_lt_u32 s2, 128")
    a(f"s_cselect_b32 {sStride}, 8192, {sStride}")
    if S1M == 0:
        a(f"s_bfe_u32 {sCb}, s2, 0x60001")
    else:
        a(f"s_lshr_b32 {st0}, {sStride}, 9")
        a(f"s_bfe_u32 {st1}, s2, 0x20001")
        a(f"s_mul_i32 {st0}, {st0}, {st1}")
        a(f"s_bfe_u32 {sCb}, s2, 0x40003")
        a(f"s_add_u32 {sCb}, {sCb}, {st0}")
    a(f"v_lshlrev_b32 {l16}, 4, {lane}")
    a(f"s_cmp_ge_u32 {wv}, 4")
    a("s_cbranch_scc1 L_compute")

    def srd(a, r, lo, size):
        a(f"s_mov_b32 {r[0]}, s{lo}")
        a(f"s_and_b32 {r[1]}, s{lo+1}, 0xffff")
        a(f"s_mov_b32 {r[2]}, {size}")
        a(f"s_mov_b32 {r[3]}, 0x20000")
    def common_consts(a):
        a(f"s_and_b32 {sHf}, s2, 31")
        a(f"s_lshr_b32 {sN}, s2, 5")
        a(f"s_mov_b32 {sHalf[0]}, 0x00ff00ff")
        a(f"s_mov_b32 {sHalf[1]}, 0x00ff00ff")
        a(f"v_lshrrev_b32 {lj}, 4, {lane}")
        a(f"v_and_b32 {lb}, 7, {lane}")
        a(f"v_mov_b32 {vFF}, 0xff")
    def make_tags(a):
        a(f"s_add_u32 {sE}, {sE}, 0xd1a7653b")
        for k in range(4):
            a(f"s_bfe_u32 {sT[k]}, {sE}, {hex(0x80000 + 8*k)}")
    def tag(a, r):
        for k in range(r.n):
            a(f"v_bfi_b32 {r[k]}, {vFF}, {sT[k & 3]}, {r[k]}")
    def orall(a, acc, x):
        n = x.n
        a(f"v_or3_b32 {acc}, {x[0]}, {x[1]}, {x[2]}")
        i = 3
        while i + 1 < n:
            a(f"v_or3_b32 {acc}, {acc}, {x[i]}, {x[i+1]}")
            i += 2
        if i < n:
            a(f"v_or_b32 {acc}, {acc}, {x[i]}")
        a(f"v_and_b32 {acc}, {vFF}, {acc}")
    def poll(a, name, loads, dst, src, sleep=0):
        a(f"s_mov_b32 {sSpin}, 0")
        a.label(f"L_{name}_chk")
        a("s_waitcnt vmcnt(0)")
        for k in range(src.n):
            a(f"v_xor_b32 {dst[k]}, {sT[k & 3]}, {src[k]}")
        orall(a, t0, dst)
        a(f"v_cmp_ne_u32 vcc, 0, {t0}")
        a(f"s_cbranch_vccz L_{name}_ok")
        a(f"s_add_u32 {sSpin}, {sSpin}, 1")
        a(f"s_cmp_gt_u32 {sSpin}, {SPIN_LIMIT}")
        a(f"s_cbranch_scc1 L_{name}_ok")
        if sleep:
            a(f"s_sleep {sleep}")
        for i, ld in enumerate(loads):
            orall(a, t0, dst[4*i:4*i+4])
            a(f"v_cmp_ne_u32 vcc, 0, {t0}")
            a(f"s_cbranch_vccz L_{name}_s{i}")
            a("s_mov_b64 exec, vcc")
            a(ld)
            a("s_mov_b64 exec, -1")
            a.label(f"L_{name}_s{i}")
        a(f"s_branch L_{name}_chk")
        a.label(f"L_{name}_ok")
    def swap16(a, r, tmp, op):
        a(f"v_mov_b32 {tmp}, {r}")
        a(f"v_permlane16_swap_b32 {r}, {tmp}")
        a(f"v_{op}_f32 {r}, {r}, {tmp}")
    def swap32(a, r, tmp, op):
        a(f"v_mov_b32 {tmp}, {r}")
        a(f"v_permlane32_swap_b32 {r}, {tmp}")
        a(f"v_{op}_f32 {r}, {r}, {tmp}")
    def ror(a, r, k, op):
        a(f"v_{op}_f32_dpp {r}, {r}, {r} row_ror:{k} row_mask:0xf bank_mask:0xf")
    def unpack(a, dst_lo, dst_hi, src):
        a(f"v_and_b32 {dst_hi}, 0xffff0000, {src}")
        a(f"v_lshlrev_b32 {dst_lo}, 16, {src}")
    def final_addrs(p):
        a, V, S = p.a, p.V, p.S
        p.vQr = V(); p.vWr = V(); p.vWr2 = V(); p.vFPp = V(); p.vH2 = V()
        a(f"v_mul_u32_u24 {t0}, {QS}, {lb}")
        a(f"v_lshl_add_u32 {t0}, {lj}, 4, {t0}")
        a(f"v_add_u32 {p.vQr}, {L_Q}, {t0}")
        a(f"v_lshlrev_b32 {t0}, 3, {lj}")
        a(f"v_sub_u32 {p.vH2}, {p.vQr}, {t0}")
        a(f"v_bfe_u32 {t0}, {lane}, 2, 2")
        a(f"v_and_b32 {t2}, 1, {lane}")
        a(f"v_lshlrev_b32 {t2}, 3, {t2}")
        a(f"v_bfe_u32 {t3}, {lane}, 1, 1")
        a(f"s_lshl_b32 {st0}, {wv}, 1")
        a(f"v_or_b32 {t3}, {st0}, {t3}")
        a(f"v_lshlrev_b32 {t1}, 1, {t0}")
        a(f"v_xor_b32 {t3}, {t3}, {t1}")
        a(f"v_lshl_add_u32 {t1}, {lj}, 3, {t0}")
        a(f"v_lshl_add_u32 {t1}, {t1}, 8, {t2}")
        a(f"v_and_b32 {p.vWr}, 1, {lj}")
        a(f"v_lshlrev_b32 {p.vWr}, 3, {p.vWr}")
        a(f"v_xor_b32 {p.vWr}, {p.vWr}, {t3}")
        a(f"v_lshl_add_u32 {p.vWr}, {p.vWr}, 4, {t1}")
        a(f"v_lshl_add_u32 {t1}, {lj}, 2, {t0}")
        a(f"v_lshl_add_u32 {t1}, {t1}, 8, {t2}")
        a(f"v_lshrrev_b32 {p.vWr2}, 1, {lj}")
        a(f"v_lshlrev_b32 {p.vWr2}, 3, {p.vWr2}")
        a(f"v_xor_b32 {p.vWr2}, {p.vWr2}, {t3}")
        a(f"v_lshl_add_u32 {p.vWr2}, {p.vWr2}, 4, {t1}")
        assert L_W == 0
        a(f"v_lshrrev_b32 {t0}, 1, {lb}")
        a(f"v_lshlrev_b32 {t0}, 12, {t0}")
        a(f"v_and_b32 {t1}, 1, {lb}")
        a(f"v_lshl_add_u32 {t0}, {t1}, 6, {t0}")
        a(f"v_lshl_add_u32 {t0}, {lj}, 4, {t0}")
        a(f"s_lshl_b32 {st0}, {sN}, 17")
        a(f"s_lshl_b32 {st1}, {sHf}, 7")
        a(f"s_add_u32 {st0}, {st0}, {st1}")
        a(f"s_lshl_b32 {st1}, {wv}, 14")
        a(f"s_add_u32 {st0}, {st0}, {st1}")
        a(f"s_add_u32 {st0}, {st0}, {FP}")
        a(f"v_add_u32 {p.vFPp}, {st0}, {t0}")
    def ffn_part(p, wf, ob, fa, fb):
        a = p.a
        for t in range(3):
            a(f"ds_read_b128 {ob[4*t:4*t+4]}, {p.vQr} offset:{(L_H - L_Q) + 64*t}")
            for hf in range(2):
                a(f"ds_read_b64_tr_b16 {wf[4*t+2*hf:4*t+2*hf+2]}, {p.vWr} offset:{(t + 4)*8192 + hf*1024}")
        a(f"ds_read_b64 {ob[12:14]}, {p.vH2} offset:{(L_H - L_Q) + 192}")
        a(f"ds_read_b64_tr_b16 {wf[12:14]}, {p.vWr2} offset:{224*256}")
        a("s_waitcnt lgkmcnt(0)")
        a(f"v_mfma_f32_16x16x32_bf16 {fa}, {wf[0:4]}, {ob[0:4]}, 0")
        a(f"v_mfma_f32_16x16x32_bf16 {fb}, {wf[4:8]}, {ob[4:8]}, 0")
        a(f"v_mfma_f32_16x16x32_bf16 {fa}, {wf[8:12]}, {ob[8:12]}, {fa}")
        a(f"v_mfma_f32_16x16x16_bf16 {fb}, {wf[12:14]}, {ob[12:14]}, {fb}")
    def attn_part(p, wf, ob, fa, fb, waves):
        a = p.a
        for t in range(4):
            a(f"ds_read_b128 {ob[4*t:4*t+4]}, {p.vQr} offset:{(L_O - L_Q) + 64*t}")
            for hf in range(2):
                a(f"ds_read_b64_tr_b16 {wf[4*t+2*hf:4*t+2*hf+2]}, {p.vWr} offset:{t*8192 + hf*1024}")
        for t in range(4):
            d = fa if t % 2 == 0 else fb
            a(f"s_waitcnt lgkmcnt({9 - 3*t})")
            a(f"v_mfma_f32_16x16x32_bf16 {d}, {wf[4*t:4*t+4]}, {ob[4*t:4*t+4]}, {d}")
        for k in range(0, 4, 2):
            a(f"v_pk_add_f32 {fa[k:k+2]}, {fa[k:k+2]}, {fb[k:k+2]}")
        tag(a, fa)
        a(f"s_mov_b64 exec, {sHalf}")
        a(f"buffer_store_dwordx4 {fa}, {p.vFPp}, {sWS}, 0 offen {hs}")
        a("s_mov_b64 exec, -1")
        stamp(p, "Fpub", waves)
    def finish(p, lab, waves):
        a = p.a
        if probe or stamps:
            a("s_waitcnt vmcnt(0)")
            stamp(p, "end", waves)
            a("s_waitcnt lgkmcnt(0)")
        if probe and p.stamps:
            pr = p.stamps[0][1]
            now = p.S(2)
            if PW is not None:
                a(f"s_cmp_lg_u32 s2, {PW}")
                a("s_cbranch_scc1 L_end")
            a(f"s_mov_b32 {sSpin}, 0")
            a.label(f"L_hold{lab}")
            a(f"s_memrealtime {now}")
            a("s_waitcnt lgkmcnt(0)")
            a(f"s_sub_u32 {st0}, {now[0]}, {pr[0]}")
            a(f"s_add_u32 {sSpin}, {sSpin}, 1")
            a(f"s_cmp_gt_u32 {sSpin}, 100000")
            a("s_cbranch_scc1 L_end")
            a(f"s_cmp_lt_u32 {st0}, 4000")
            a(f"s_cbranch_scc1 L_hold{lab}")
        if stamps:
            a(f"s_lshl_b32 {st0}, s2, 3")
            a(f"s_add_u32 {st0}, {st0}, {wv}")
            a(f"s_lshl_b32 {st0}, {st0}, 7")
            a(f"s_add_u32 {st0}, {st0}, {ST}")
            a("s_mov_b64 exec, 1")
            for i, r_ in p.stamps:
                a(f"v_mov_b32 {t0}, {r_[0]}")
                a(f"buffer_store_dword {t0}, off, {sWS}, {st0} offset:{4*i}")
                a("s_nop 1")
        a("s_endpgm")

    PL = mkpath(P0)
    a, S, V = PL.a, PL.S, PL.V
    sK, sV_, sS1, sWO, sW2 = [S(4) for _ in range(5)]
    sS1off, sS1step, sLdsW = S(), S(), S()
    a(f"s_lshl_b32 {st1}, {sKh}, 9")
    a(f"s_lshl_b32 {st2}, {wv}, 7")
    a(f"s_add_u32 {st1}, {st1}, {st2}")
    a(f"s_mul_i32 {st1}, {st1}, {sStride}")
    a(f"s_lshl_b32 {st2}, {sCb}, 7")
    a(f"s_add_u32 {sS1off}, {st1}, {st2}")
    a(f"s_lshl_b32 {sS1step}, {sStride}, 3")
    a(f"s_lshl_b32 {sLdsW}, {wv}, 15")
    vS1 = V(2)
    a(f"v_lshrrev_b32 {t0}, 3, {lane}")
    a(f"v_and_b32 {t1}, 7, {lane}")
    a(f"v_and_b32 {t2}, 2, {t0}")
    a(f"v_xor_b32 {t1}, {t1}, {t2}")
    a(f"v_lshlrev_b32 {t1}, 4, {t1}")
    a(f"v_mul_lo_u32 {t0}, {t0}, {sStride}")
    a(f"v_add_u32 {vS1[0]}, {t0}, {t1}")
    a(f"v_xor_b32 {t1}, 64, {t1}")
    a(f"v_add_u32 {vS1[1]}, {t0}, {t1}")
    if SP != 128:
        assert STREAM
        m = SP // 128; lg = m.bit_length() - 1
        if SP <= 1024:
            a(f"v_lshrrev_b32 {t0}, {3 + lg}, {lane}")
            a(f"v_and_b32 {t1}, {8*m - 1}, {lane}")
            a(f"v_lshlrev_b32 {t1}, 4, {t1}")
            a(f"v_mul_lo_u32 {t0}, {t0}, {sStride}")
            a(f"v_add_u32 {vS1[0]}, {t0}, {t1}")
            a(f"v_mov_b32 {vS1[1]}, {vS1[0]}")
            a(f"s_and_b32 {st0}, {sCb}, {m - 1}")
            a(f"s_lshl_b32 {st0}, {st0}, {9 - lg}")
            a(f"s_lshl_b32 {st1}, {sKh}, 9")
            a(f"s_add_u32 {st0}, {st0}, {st1}")
            a(f"s_lshl_b32 {st1}, {wv}, {7 - lg}")
            a(f"s_add_u32 {st0}, {st0}, {st1}")
            a(f"s_mul_i32 {st0}, {st0}, {sStride}")
            a(f"s_lshr_b32 {st1}, {sCb}, {lg}")
            a(f"s_lshl_b32 {st1}, {st1}, {7 + lg}")
            a(f"s_add_u32 {sS1off}, {st0}, {st1}")
            a(f"s_lshl_b32 {sS1step}, {sStride}, {3 - lg}")
        else:
            a(f"v_mov_b32 {vS1[0]}, {l16}")
            a(f"v_mov_b32 {vS1[1]}, {l16}")
            a(f"s_and_b32 {st0}, s2, 127")
            a(f"s_lshl_b32 {st0}, {st0}, 16")
            a(f"s_lshl_b32 {st1}, {wv}, 14")
            a(f"s_add_u32 {sS1off}, {st0}, {st1}")
            a(f"s_mov_b32 {sS1step}, 1024")
    a(f"s_lshl_b32 {sS1[2]}, {sStride}, 10")
    a("s_cmp_lt_u32 s2, 240")
    a(f"s_cselect_b32 {sS1[2]}, {sS1[2]}, 0")
    a(f"s_mov_b32 {sS1[3]}, 0x20000")
    if PRIO:
        a(f"s_setprio {PRIO}")
    a("s_cmp_lt_u32 s2, 128")
    a("s_waitcnt lgkmcnt(0)")
    a(f"s_cselect_b32 {sS1[0]}, s10, s16")
    a(f"s_cselect_b32 {sS1[1]}, s11, s17")
    a(f"s_and_b32 {sS1[1]}, {sS1[1]}, 0xffff")
    if ST0: stamp(PL, "karg", LW)
    big = []
    state = {"n": 0, "kv": False, "b2": False, "b5": False, "c0": None}
    sM = S(); vC = V(); vCr = V(); sTr = S(2); vTrc = V()
    if CT: a(f"v_mov_b32 {vC}, {L_C}")
    NS, NK, NVV, NW = 16, 48, 80, 95
    pos = {t: 8 + i for i, t in enumerate(KP.split())} if KP else None
    vVo = V()
    vK = V(4); vWo = V(); vW2 = V(); vV = V(128)
    sKV, sRot, sRot2, sWo, sW2o, sLdsI = S(), S(), S(), S(), S(), S()
    order = []
    si = ki = 0
    while si < 16:
        for _ in range(IL[0]):
            if si < 16: order.append(("S", si)); si += 1
        if si < 16:
            for _ in range(IL[1]):
                order.append(("K", ki)); ki += 1
    while ki < 16:
        order.append(("K", ki)); ki += 1
    order += [("V", i) for i in range(VG)] + [("K", i) for i in range(16, 32)] + [("V", i) for i in range(VG, 32)]
    order += [("W", i) for i in range(15)]
    assert len(order) == NW
    def win(n):
        d = D
        for n0, dn in SCH:
            if n >= n0: d = dn
        return d
    def issue(count=1, paced=True):
        for _ in range(count):
            n = state["n"]
            if n >= NW: return
            dd = win(n)
            if paced and n - dd >= 0:
                if CT and CT["slot"] <= n < CT["end"] and dd < CT["D"]:
                    assert state["b2"]
                    if (n - CT["slot"]) % CT["every"] == 0:
                        a(f"ds_read_b32 {vCr}, {vC}")
                        a("s_waitcnt lgkmcnt(0)")
                        a(f"v_readfirstlane_b32 {sM}, {vCr}")
                    a.wait_vm(big[n - CT["D"]])
                    a(f"s_cmp_gt_i32 {sM}, {n}")
                    a(f"s_cbranch_scc1 L_deep{n}")
                    a.wait_vm(big[n - dd])
                    a.label(f"L_deep{n}")
                else:
                    a.wait_vm(big[n - dd])
            if TR and n >= TR[0] and (n - TR[0]) % TR[1] == 0 and n < TR[0] + TR[1]*TR[2]:
                a(f"s_memrealtime {sTr}")
                a("s_waitcnt lgkmcnt(0)")
                a(f"v_writelane_b32 {vTrc}, {sTr[0]}, {(n - TR[0]) // TR[1]}")
            kind, p = order[n]
            if kind == "S":
                a(f"s_add_u32 m0, {sLdsW}, {16384 + 1024*p}")
                a.vmem(f"buffer_load_dwordx4 {vS1[p&1]}, {sS1}, {sS1off} offen {FL} lds", f"S{p}")
                if p < NS - 1:
                    a(f"s_add_u32 {sS1off}, {sS1off}, {sS1step}")
            elif kind in "KV":
                assert state["kv"]
                if KP:
                    a(f"s_xor_b32 {st0}, {sKV}, {hex(sum(((p >> i) & 1) << pos[f'p{i}'] for i in range(5)))}")
                elif KVM == 0:
                    a(f"s_add_u32 {st0}, {sRot}, {p}")
                    a(f"s_and_b32 {st0}, {st0}, 31")
                else:
                    a(f"s_add_u32 {st0}, {sRot2 if p & 1 else sRot}, {p >> 1}")
                    a(f"s_and_b32 {st0}, {st0}, 15")
                    if p & 1:
                        a(f"s_or_b32 {st0}, {st0}, 16")
                if not KP:
                    a(f"s_lshl_b32 {st0}, {st0}, 10")
                    a(f"s_add_u32 {st0}, {st0}, {sKV}")
                if kind == "K":
                    assert p < 16 or state["b2"]
                    a(f"s_add_u32 m0, {sLdsW}, {1024*p}")
                    a.vmem(f"buffer_load_dwordx4 {vK[p&3]}, {sK}, {st0} offen {FL} lds", f"K{p}")
                elif VL:
                    assert STREAM
                    a(f"s_add_u32 m0, {sLdsW}, {1024*p}")
                    a.vmem(f"buffer_load_dwordx4 {vK[p&3]}, {sV_}, {st0} offen {FL} lds", f"V{p}")
                else:
                    a.vmem(f"buffer_load_dwordx4 {vV[4*p:4*p+4]}, {vVo if KP else l16}, {sV_}, {st0} offen {FL}", f"V{p}")
            else:
                assert state["b5"]
                i = p
                if i < 7:
                    a(f"s_add_u32 {st0}, {sW2o}, {i*16*2048}")
                    a(f"s_add_u32 m0, {sLdsI}, {L_W + 32768 + i*4096}")
                    a.vmem(f"buffer_load_dwordx4 {vW2}, {sW2}, {st0} offen {FL} lds", f"W{i}")
                else:
                    a(f"s_add_u32 {st0}, {sWo}, {(i - 7)*2048}")
                    a(f"s_add_u32 m0, {sLdsI}, {L_W + (i - 7)*4096}")
                    a.vmem(f"buffer_load_dwordx4 {vWo}, {sWO}, {st0} offen {FL} lds", f"W{i}")
            big.append(f"{kind}{p}")
            state["n"] = n + 1
    def issue_until(n):
        issue(max(0, n - state["n"]))
    def land(tagname, extra=None):
        while tagname not in big:
            issue(1)
        idx = big.index(tagname)
        while state["n"] < NW:
            n = state["n"]
            dd = win(n)
            if n - dd > idx or (extra is not None and n - dd == idx): break
            issue(1)
        if extra:
            issue(extra, paced=False)
        a.wait_vm(tagname)
    issue(min(D, IL[0]))
    a(f"s_load_dword {sE}, s[28:29], {hex(EPO)}")
    srd(a, sK, 6, 1 << 25); srd(a, sV_, 8, 1 << 25); srd(a, sWO, 12, 1 << 23); srd(a, sW2, 20, 3584*2048)
    srd(a, sWS, 28, WS_SIZE)
    if AP:
        assert STREAM
        a(f"s_lshr_b32 {st0}, s2, 4")
        a(f"s_and_b32 {st0}, {st0}, 7")
        a(f"s_and_b32 {st1}, s2, 15")
        a(f"s_cmp_eq_u32 {st0}, {st1}")
        a(f"s_cselect_b32 {sK[0]}, s8, s6")
        a(f"s_cselect_b32 {sK[1]}, s9, s7")
        a(f"s_cselect_b32 {sV_[0]}, s6, s8")
        a(f"s_cselect_b32 {sV_[1]}, s7, s9")
        a(f"s_and_b32 {sK[1]}, {sK[1]}, 0xffff")
        a(f"s_and_b32 {sV_[1]}, {sV_[1]}, 0xffff")
    S.give(4, 28)
    common_consts(a)
    if KP:
        a(f"v_and_b32 {t3}, 1, {lj}")
        a(f"v_lshlrev_b32 {t3}, {pos['j0']}, {t3}")
        a(f"v_lshrrev_b32 {t2}, 1, {lj}")
        a(f"v_lshl_add_u32 {t3}, {t2}, {pos['j1']}, {t3}")
    a(f"v_and_b32 {t1}, 15, {lane}")
    a(f"v_lshlrev_b32 {t2}, 2, {lj}")
    a(f"v_xor_b32 {t1}, {t1}, {t2}")
    for p in range(4):
        a(f"v_xor_b32 {t2}, {p}, {t1}")
        a(f"v_lshlrev_b32 {t2}, 4, {t2}")
        if KP:
            a(f"v_add_u32 {vK[p]}, {t3}, {t2}")
        else:
            a(f"v_lshl_add_u32 {vK[p]}, {lj}, 8, {t2}")
    if KP:
        a(f"v_and_b32 {t2}, 0xf0, {l16}")
        a(f"v_add_u32 {vVo}, {t3}, {t2}")
        a(f"s_lshr_b32 {sKV}, s2, 3")
        a(f"s_lshl_b32 {sKV}, {sKV}, 20")
        def put(src, dstbit):
            reg, bit = {"s": ("s2", 0), "g": ("s2", 3), "v": (wv, 0)}[src[0]]
            a(f"s_bfe_u32 {st0}, {reg}, {hex(0x10000 + bit + int(src[1]))}")
            a(f"s_lshl_b32 {st0}, {st0}, {dstbit}")
            a(f"s_xor_b32 {sKV}, {sKV}, {st0}")
        for t_ in ("s0", "s1", "s2", "v0", "v1"):
            put(t_, pos[t_])
        for dst, src in RX:
            assert dst[0] == "p"
            put(src, pos[dst])
    else:
        a(f"s_lshl_b32 {sKV}, s2, 17")
        a(f"s_add_u32 {sKV}, {sKV}, {sLdsW}")
        a(f"s_lshr_b32 {st0}, s2, 3")
        if KVM == 0:
            a(f"s_lshl_b32 {sRot}, {wv}, 3")
            a(f"s_add_u32 {sRot}, {sRot}, {st0}")
        else:
            a(f"s_lshl_b32 {sRot}, {wv}, 2")
            a(f"s_add_u32 {sRot}, {sRot}, {st0}")
            a(f"s_add_u32 {sRot2}, {sRot}, 2")
    state["kv"] = True
    issue_until(D)
    if ST0: stamp(PL, "pre0", LW)
    issue(1)
    if ST0: stamp(PL, "S0landed", LW)
    a(f"v_and_b32 {t1}, 15, {lane}")
    a(f"v_lshlrev_b32 {t2}, 1, {lj}")
    a(f"v_xor_b32 {t1}, {t1}, {t2}")
    a(f"s_lshl_b32 {st0}, {wv}, 2")
    a(f"s_and_b32 {st0}, {st0}, 8")
    a(f"v_xor_b32 {t1}, {st0}, {t1}")
    a(f"v_lshlrev_b32 {t1}, 4, {t1}")
    a(f"v_lshl_add_u32 {vWo}, {lj}, 14, {t1}")
    a(f"v_lshl_add_u32 {vW2}, {lj}, 11, {t1}")
    a(f"s_lshl_b32 {st0}, {wv}, 5")
    a(f"s_lshl_b32 {st1}, {sHf}, 7")
    a(f"s_add_u32 {st0}, {st0}, {st1}")
    a(f"s_lshl_b32 {st0}, {st0}, 11")
    a(f"s_lshl_b32 {st1}, {sN}, 8")
    a(f"s_add_u32 {sWo}, {st0}, {st1}")
    a(f"s_mul_i32 {st0}, {sHf}, 112")
    a(f"s_lshl_b32 {st2}, {wv}, 2")
    a(f"s_add_u32 {st0}, {st0}, {st2}")
    a(f"s_lshl_b32 {st0}, {st0}, 11")
    a(f"s_add_u32 {sW2o}, {st0}, {st1}")
    a(f"s_lshl_b32 {sLdsI}, {wv}, 10")
    issue(1)
    final_addrs(PL)
    issue(1)
    vOw = V(); vPr = V()
    a(f"v_mul_u32_u24 {t0}, 144, {lj}")
    a(f"v_lshl_add_u32 {t0}, {lb}, 4, {t0}")
    a(f"s_mul_i32 {st0}, {wv}, 4608")
    a(f"s_add_u32 {st0}, {st0}, {L_OS}")
    a(f"v_add_u32 {vOw}, {st0}, {t0}")
    a(f"v_lshlrev_b32 {t0}, 7, {lj}")
    a(f"v_lshl_add_u32 {t0}, {lb}, 4, {t0}")
    a(f"s_lshl_b32 {st0}, {wv}, 11")
    a(f"s_add_u32 {st0}, {st0}, {L_P}")
    a(f"v_add_u32 {vPr}, {st0}, {t0}")
    sPlo, sPhi = S(), S()
    a(f"s_mov_b32 {sPlo}, 0x05040100")
    a(f"s_mov_b32 {sPhi}, 0x07060302")
    if ST0:
        land("S7"); stamp(PL, "S7landed", LW)
    land("S15")
    if ST0: stamp(PL, "S15landed", LW)
    a("s_waitcnt lgkmcnt(0)")
    make_tags(a)
    stamp(PL, "Slanded", LW)
    a("s_barrier")
    if DL:
        assert STREAM
        a(f"s_lshr_b32 {st0}, s2, 4")
        a(f"s_and_b32 {st0}, {st0}, 7")
        a(f"s_and_b32 {st1}, s2, 15")
        a(f"s_xor_b32 {st1}, {st1}, 8")
        a(f"s_cmp_eq_u32 {st0}, {st1}")
        a("s_cbranch_scc0 L_nodl")
        a(f"s_sleep {DL}")
        a.label("L_nodl")
    issue(N2)
    a("s_barrier")
    state["b2"] = True
    issue_until(GS)
    if CT: a.wait_vm(big[state["n"] - 1 - win(state["n"])])
    a("s_barrier")
    land("K31")
    stamp(PL, "Klanded", LW)
    issue(N4)
    a("s_barrier")
    issue(N5)
    if CT: a.wait_vm(big[state["n"] - 1 - win(state["n"])])
    stamp(PL, "LB5", LW)
    a("s_barrier")
    state["b5"] = True
    Pp = V(16); vt = V(32); acc = V(32)
    def perm_pair(G, ip):
        x0 = vV[4*(8*G + 2*ip):4*(8*G + 2*ip) + 4]
        x1 = vV[4*(8*G + 2*ip + 1):4*(8*G + 2*ip + 1) + 4]
        for e in range(8):
            a(f"v_perm_b32 {vt[4*e + ip]}, {x1[e>>1]}, {x0[e>>1]}, {sPhi if e & 1 else sPlo}")
    def pv(G):
        for e in range(8):
            c = "0" if G == 0 else str(acc[4*e:4*e+4])
            a(f"v_mfma_f32_16x16x32_bf16 {acc[4*e:4*e+4]}, {vt[4*e:4*e+4]}, {Pp[4*G:4*G+4]}, {c}")
    if not STREAM:
        for G in range(4):
            a(f"ds_read_b128 {Pp[4*G:4*G+4]}, {vPr} offset:{512*G}")
        for G in range(4):
            for ip in range(4):
                last = f"V{8*G + 2*ip + 1}"
                if last in big and state["n"] - big.index(last) > win(state["n"]) and state["n"] < NVV + win(state["n"]) - 1:
                    issue(1)
                if G == 3 and ip == 3:
                    land(last, TW)
                    stamp(PL, "Vlanded", LW)
                else:
                    land(last)
                perm_pair(G, ip)
            if G == 0:
                a("s_waitcnt lgkmcnt(0)")
            pv(G)
        a(f"s_mov_b64 exec, {sHalf}")
        for e in range(8):
            a(f"ds_write_b128 {vOw}, {acc[4*e:4*e+4]} offset:{576*e}")
        a("s_mov_b64 exec, -1")
        a("s_waitcnt lgkmcnt(0)")
    else:
        land("V31")
        stamp(PL, "Vlanded", LW)
    a("s_barrier")
    land("W6")
    stamp(PL, "W2landed", LW)
    a("s_barrier")
    issue(NW, paced=False)
    wf, ob, fa, fb = vV[0:16], vV[16:32], vV[32:36], vV[36:40]
    if not STREAM:
        ffn_part(PL, wf, ob, fa, fb)
    a("s_waitcnt vmcnt(0)")
    stamp(PL, "Wlanded", LW)
    a("s_barrier")
    if not STREAM:
        attn_part(PL, wf, ob, fa, fb, LW)
    if TR:
        a(f"s_lshl_b32 {st0}, s2, 2")
        a(f"s_add_u32 {st0}, {st0}, {wv}")
        a(f"s_lshl_b32 {st0}, {st0}, 8")
        a(f"s_add_u32 {st0}, {st0}, {ST + 0x80000}")
        a(f"v_lshlrev_b32 {t0}, 2, {lane}")
        a(f"buffer_store_dword {vTrc}, {t0}, {sWS}, {st0} offen")
    finish(PL, "L", LW)

    PC = mkpath(P0)
    a, S, V = PC.a, PC.S, PC.V
    a.label("L_compute")
    sX, sB1, sB2, sOUT = [S(4) for _ in range(4)]
    cw = S()
    a(f"s_sub_u32 {cw}, {wv}, 4")
    sXa, sXb = S(), S()
    vX = V()
    a(f"v_lshrrev_b32 {t0}, 5, {lane}")
    a(f"v_and_b32 {t1}, 31, {lane}")
    a(f"v_lshlrev_b32 {t1}, 4, {t1}")
    a(f"v_lshl_add_u32 {vX}, {t0}, 11, {t1}")
    a(f"s_lshl_b32 {st1}, {cw}, 12")
    a(f"s_lshl_b32 {st2}, {sKh}, 10")
    a(f"s_add_u32 {sXa}, {st1}, {st2}")
    a(f"s_xor_b32 {sXb}, {sXa}, 1024")
    vXw = V()
    a(f"s_mul_i32 {st0}, {cw}, {2*XNS}")
    a(f"s_add_u32 {st0}, {st0}, {L_XN}")
    a(f"v_mul_u32_u24 {t0}, {XNS}, {t0}")
    a(f"v_add3_u32 {vXw}, {t0}, {t1}, {st0}")
    a("s_waitcnt lgkmcnt(0)")
    srd(a, sX, 4, 16384)
    xr = V(16)
    if True:
        for c in range(4):
            a.vmem(f"buffer_load_dwordx4 {xr[4*c:4*c+4]}, {vX}, {sX}, {sXa if c < 2 else sXb} offen offset:{512*(c&1)}", "x")
    a(f"s_load_dword {sE}, s[28:29], {hex(EPO)}")
    if PF:
        pf = V(8)
        a(f"s_cmp_lg_u32 {cw}, {PF - 1}")
        a("s_cbranch_scc1 L_nopf")
        a("s_mov_b64 exec, 1")
        a(f"s_lshl_b32 {st0}, s2, 17")
        a(f"v_mov_b32 {t0}, {st0}")
        a(f"global_load_dword {pf[0]}, {t0}, s[6:7]")
        a(f"global_load_dword {pf[1]}, {t0}, s[8:9]")
        a(f"s_and_b32 {st0}, s2, 31")
        a(f"s_lshl_b32 {st1}, {st0}, 18")
        a(f"v_mov_b32 {t1}, {st1}")
        a(f"global_load_dword {pf[2]}, {t1}, s[12:13]")
        a(f"s_mul_i32 {st1}, {st0}, {112*2048}")
        a(f"v_mov_b32 {t2}, {st1}")
        a(f"global_load_dword {pf[3]}, {t2}, s[20:21]")
        a(f"s_lshl_b32 {st0}, s2, 7")
        a(f"s_add_u32 {st0}, {st0}, 0xc0000")
        a(f"v_mov_b32 {t0}, {st0}")
        a(f"global_load_dword {pf[4]}, {t0}, s[28:29]")
        a(f"v_add_u32 {t0}, 0x240000, {t0}")
        a(f"global_load_dword {pf[5]}, {t0}, s[28:29]")
        a("s_mov_b64 exec, -1")
        a.label("L_nopf")
    srd(a, sB1, 18, 7168); srd(a, sB2, 22, 2048); srd(a, sOUT, 24, 16384); srd(a, sWS, 28, WS_SIZE)
    S.give(4, 28)
    common_consts(a)
    vPeer = V(); ctv = V(); ctr = V()
    def ct_setup():
        a(f"s_and_b32 {st0}, s2, 0x38")
        a(f"v_bfe_u32 {t0}, {lane}, 3, 2")
        a(f"v_lshl_add_u32 {t0}, {t0}, 6, {lb}")
        a(f"v_add_u32 {t0}, {st0}, {t0}")
        a(f"v_subrev_u32 {t1}, 64, {t0}")
        a(f"v_cmp_gt_u32 vcc, 240, {t0}")
        a(f"v_cndmask_b32 {t0}, {t1}, {t0}, vcc")
        a(f"v_lshlrev_b32 {vPeer}, {CT['sh']}, {t0}")
        if CT.get("noself"):
            a(f"v_mov_b32 {t1}, {OOB}")
            if CT["noself"] == 1:
                a(f"v_cmp_eq_u32 vcc, s2, {t0}")
            else:
                a(f"s_and_b32 {st0}, s2, 7")
                a(f"v_cmp_eq_u32 vcc, {st0}, {lb}")
            a(f"v_cndmask_b32 {vPeer}, {vPeer}, {t1}, vcc")
        a(f"v_mov_b32 {t0}, {L_C}")
        a(f"v_mov_b32 {t1}, 0")
        a(f"ds_write_b32 {t0}, {t1}")
    def ct_send(c, lab):
        a(f"s_cmp_lg_u32 {cw}, 3")
        a(f"s_cbranch_scc1 L_cts{lab}{c}")
        a(f"s_lshl_b32 {st0}, s2, {CT['sh']}")
        a(f"s_add_u32 {st0}, {st0}, {TS + c*0x8000}")
        a(f"s_mov_b32 {st1}, {TS + c*0x8000}")
        a(f"v_mov_b32 {ctv}, {sE}")
        a("s_mov_b64 exec, 1")
        if not CT.get("nostore"):
            a(f"buffer_store_dword {ctv}, off, {sWS}, {st0} sc1")
        a(f"s_bfm_b64 exec, {CT.get('np', 32)}, 0")
        if not CT.get("noload"):
            a(f"buffer_load_dword {ctr}, {vPeer}, {sWS}, {st1} offen sc1")
        a("s_mov_b64 exec, -1")
        a.label(f"L_cts{lab}{c}")
    def ct_eval(c, lab):
        base, c1, k = CT["pts"][c]
        a(f"s_cmp_lg_u32 {cw}, 3")
        a(f"s_cbranch_scc1 L_cte{lab}{c}")
        a("s_waitcnt vmcnt(0)")
        a(f"v_cmp_eq_u32 vcc, {sE}, {ctr}")
        a(f"s_bcnt1_i32_b32 {st0}, vcc_lo")
        if stamps:
            a(f"s_mov_b32 {sSpin}, {st0}")
            count(PC, f"r{c}", [7])
        a(f"s_mul_i32 {st0}, {st0}, {k}")
        a(f"s_add_i32 {st0}, {st0}, {base*4 - c1*k}")
        a(f"s_ashr_i32 {st0}, {st0}, 2")
        a(f"v_mov_b32 {t0}, {L_C}")
        a(f"v_mov_b32 {t1}, {st0}")
        a(f"ds_write_b32 {t0}, {t1}")
        a.label(f"L_cte{lab}{c}")
    if STREAM:
        a("s_waitcnt lgkmcnt(0)")
        make_tags(a)
        if CT:
            ct_setup(); a("s_waitcnt lgkmcnt(0)")
        for bi in range(8):
            a("s_barrier")
            if CT:
                c = {0: 0, 2: 1, 3: 2, 4: 3}.get(bi)
                if c is not None and c < len(CT["pts"]):
                    ct_send(c, "s")
                    if bi: ct_eval(c, "s")
                if bi == 1: ct_eval(0, "s")
        a(f"s_mov_b32 {st1}, {OOB}")
        a("s_cmp_eq_u32 s2, 0")
        a(f"s_cselect_b32 {st0}, {EPO}, {st1}")
        a(f"v_mov_b32 {t0}, {sE}")
        a(f"buffer_store_dword {t0}, off, {sWS}, {st0}")
        finish(PC, "C0", CW)
        keep = (a.lines + ["L_end:", "s_endpgm"], list(stamp_names))
    sB, sG, sSp = S(), S(), S()
    a(f"s_lshr_b32 {sB}, s2, 5")
    a(f"s_bfe_u32 {sG}, s2, 0x20003")
    a(f"s_and_b32 {sSp}, s2, 7")
    tq = V(); th = V(); tl = V()
    a(f"v_and_b32 {tq}, 255, v0")
    a(f"v_lshrrev_b32 {th}, 5, {tq}")
    a(f"v_and_b32 {tl}, 31, {tq}")
    vOut = V(); xo = V(2); b2o = V(2); b1o = V(2)
    a(f"s_lshr_b32 {st0}, {sHf}, 2")
    a(f"s_lshl_b32 {st0}, {st0}, 5")
    a(f"s_lshl_b32 {st1}, {sN}, 8")
    a(f"s_add_u32 {st0}, {st0}, {st1}")
    a(f"v_and_b32 {t0}, 3, {lane}")
    a(f"v_lshl_add_u32 {t0}, {t0}, 3, {st0}")
    a(f"s_and_b32 {st1}, {sHf}, 3")
    a(f"s_lshl_b32 {st1}, {st1}, 12")
    a(f"v_bfe_u32 {t1}, {lane}, 2, 1")
    a(f"v_lshl_add_u32 {t1}, {t1}, 11, {st1}")
    a(f"v_add_u32 {vOut}, {t0}, {t1}")
    a.vmem(f"buffer_load_dwordx2 {xo}, {vOut}, {sX}, 0 offen", "xo")
    a.vmem(f"buffer_load_dwordx2 {b2o}, {t0}, {sB2}, 0 offen", "b2o")
    vGq = V(); vGh = V(); vGl = V()
    sGq = S(2); sGh = S(2)
    a(f"s_lshl_b32 {st0}, {sB}, 14")
    a(f"s_lshl_b32 {st1}, {sG}, 12")
    a(f"s_add_u32 {sGq[0]}, {st0}, {st1}")
    assert QP == 0
    a(f"s_add_u32 {sGq[1]}, {sGq[0]}, 131072")
    a(f"v_lshlrev_b32 {vGq}, 4, {tq}")
    a(f"s_mul_i32 {st0}, {sHf}, 448")
    a(f"s_add_u32 {sGh[0]}, {st0}, {HP}")
    a(f"s_add_u32 {sGh[1]}, {sGh[0]}, 114688")
    a(f"v_mul_u32_u24 {t1}, 14336, {th}")
    a(f"v_min_u32 {t2}, 27, {tl}")
    a(f"v_lshl_add_u32 {vGh}, {t2}, 4, {t1}")
    a(f"s_mul_i32 {st0}, {sHf}, 224")
    a(f"v_lshlrev_b32 {t2}, 3, {t2}")
    a.vmem(f"buffer_load_dwordx2 {b1o}, {t2}, {sB1}, {st0} offen", "b1o")
    S.give(sX); S.give(sB1); S.give(sB2)
    a(f"v_mul_u32_u24 {t0}, {QS}, {th}")
    a(f"v_lshl_add_u32 {t0}, {tl}, 3, {t0}")
    a(f"v_add_u32 {vGl}, {L_Q}, {t0}")
    mA = V.mark()
    f = V(32)
    a.wait_vm("x")
    if ST0: stamp(PC, "xlanded", CW)
    for i in range(16):
        unpack(a, f[2*i], f[2*i+1], xr[i])
    s4 = V(4)
    for k in range(4):
        a(f"v_add_f32 {s4[k]}, {f[k]}, {f[4+k]}")
    for i in range(8, 32):
        a(f"v_add_f32 {s4[i&3]}, {s4[i&3]}, {f[i]}")
    sa, sb = s4[0], s4[1]
    def sum4():
        a(f"v_add_f32 {s4[0]}, {s4[0]}, {s4[1]}")
        a(f"v_add_f32 {s4[2]}, {s4[2]}, {s4[3]}")
        a(f"v_add_f32 {s4[0]}, {s4[0]}, {s4[2]}")
        for k in (8, 4, 2, 1):
            ror(a, sa, k, "add")
        swap16(a, sa, t0, "add")
    sum4()
    mu = V(); d4 = V(4)
    a(f"v_mul_f32 {mu}, 0x3a800000, {sa}")
    for i in range(0, 32, 4):
        for k in range(4):
            a(f"v_sub_f32 {d4[k]}, {f[i+k]}, {mu}")
        for k in range(4):
            a(f"v_mul_f32 {s4[k]}, {d4[k]}, {d4[k]}" if i == 0 else f"v_fmac_f32 {s4[k]}, {d4[k]}, {d4[k]}")
    sum4()
    a(f"v_mul_f32 {sa}, 0x3a800000, {sa}")
    a(f"v_cvt_pk_bf16_f32 {t0}, {mu}, {sa}")
    unpack(a, mu, sa, t0)
    a(f"v_add_f32 {sa}, 0x3727c5ac, {sa}")
    a(f"v_cvt_pk_bf16_f32 {t0}, {sa}, {sa}")
    a(f"v_lshlrev_b32 {sa}, 16, {t0}")
    a(f"v_sqrt_f32 {sa}, {sa}")
    a(f"v_cvt_pk_bf16_f32 {t0}, {sa}, {sa}")
    a(f"v_lshlrev_b32 {sa}, 16, {t0}")
    a(f"v_rcp_f32 {sb}, {sa}")
    for i in range(8):
        a(f"v_sub_f32 {t0}, {f[2*i]}, {mu}")
        a(f"v_sub_f32 {t1}, {f[2*i+1]}, {mu}")
        a(f"v_cvt_pk_bf16_f32 {t0}, {t0}, {t1}")
        unpack(a, f[2*i], f[2*i+1], t0)
        for k in (2*i, 2*i+1):
            a(f"v_mul_f32 {t0}, {f[k]}, {sb}")
            a(f"v_fma_f32 {t1}, -{t0}, {sa}, {f[k]}")
            a(f"v_fma_f32 {f[k]}, {t1}, {sb}, {t0}")
        a(f"v_cvt_pk_bf16_f32 {xr[i]}, {f[2*i]}, {f[2*i+1]}")
    a(f"ds_write_b128 {vXw}, {xr[0:4]}")
    a(f"ds_write_b128 {vXw}, {xr[4:8]} offset:512")
    V.release(mA)
    sLdsC = S()
    a(f"s_lshl_b32 {sLdsC}, {cw}, 15")
    mB = V.mark()
    vXn = V(); vTr = V(4); vS1w = V(); vS1r = V(); vPub = V()
    a(f"v_mul_u32_u24 {t0}, {XNS}, {lb}")
    a(f"v_lshl_add_u32 {t0}, {lj}, 4, {t0}")
    a(f"s_lshl_b32 {st0}, {cw}, 8")
    a(f"s_add_u32 {st0}, {st0}, {L_XN}")
    a(f"v_add_u32 {vXn}, {st0}, {t0}")
    a(f"v_bfe_u32 {t0}, {lane}, 2, 2")
    a(f"v_lshl_add_u32 {t1}, {lj}, 3, {t0}")
    a(f"v_lshlrev_b32 {t1}, 7, {t1}")
    a(f"v_and_b32 {t2}, 1, {lane}")
    a(f"v_lshl_add_u32 {t1}, {t2}, 3, {t1}")
    a(f"s_add_u32 {st0}, {sLdsC}, 16384")
    a(f"v_add_u32 {t1}, {st0}, {t1}")
    a(f"v_and_b32 {t0}, 2, {t0}")
    a(f"v_and_b32 {t2}, 1, {lj}")
    a(f"v_lshl_or_b32 {t0}, {t2}, 2, {t0}")
    a(f"v_bfe_u32 {t2}, {lane}, 1, 1")
    a(f"v_or_b32 {t0}, {t0}, {t2}")
    for ct in range(4):
        a(f"v_xor_b32 {t2}, {2*ct}, {t0}")
        a(f"v_lshl_add_u32 {vTr[ct]}, {t2}, 4, {t1}")
    a(f"v_mul_u32_u24 {t0}, {S1R}, {lb}")
    a(f"v_lshl_add_u32 {t0}, {lj}, 4, {t0}")
    a(f"s_mul_i32 {st0}, {cw}, {S1W}")
    a(f"s_add_u32 {st0}, {st0}, {L_S1}")
    a(f"v_add_u32 {vS1w}, {st0}, {t0}")
    a(f"s_lshl_b32 {st0}, {cw}, 2")
    a(f"v_add_u32 {t3}, {st0}, {lj}")
    a(f"v_mul_u32_u24 {t0}, {S1R}, {t3}")
    a(f"v_and_b32 {t1}, 15, {lane}")
    a(f"v_lshl_add_u32 {t0}, {t1}, 4, {t0}")
    a(f"v_add_u32 {vS1r}, {L_S1}, {t0}")
    a(f"s_lshl_b32 {st1}, {sStride}, 1")
    a(f"v_mul_lo_u32 {t2}, {t3}, {st1}")
    a(f"v_lshl_add_u32 {vPub}, {t1}, 4, {t2}")
    sPub = S()
    a("s_cmp_lt_u32 s2, 128")
    a(f"s_cselect_b32 {sPub}, {QP}, {HP}")
    a(f"s_lshl_b32 {st1}, {sStride}, 4")
    a(f"s_mul_i32 {st1}, {st1}, {sKh}")
    a(f"s_add_u32 {sPub}, {sPub}, {st1}")
    a(f"s_lshl_b32 {st1}, {sCb}, 8")
    a(f"s_add_u32 {sPub}, {sPub}, {st1}")
    a("s_cmp_lt_u32 s2, 240")
    a(f"s_cselect_b32 {sPub}, {sPub}, {OOB}")
    a("s_waitcnt lgkmcnt(0)")
    make_tags(a)
    stamp(PC, "LNdone", CW)
    a("s_barrier")
    xnb = V(16); wt = V(64); acc1 = V(16)
    for t in range(4):
        a(f"ds_read_b128 {xnb[4*t:4*t+4]}, {vXn} offset:{64*t}")
        for ct in range(4):
            for hf in range(2):
                o = (t*4 + ct)*4 + hf*2
                a(f"ds_read_b64_tr_b16 {wt[o:o+2]}, {vTr[ct]} offset:{t*4096 + hf*512}")
        if t >= 1:
            a("s_waitcnt lgkmcnt(9)")
            for ct in range(4):
                o = ((t-1)*4 + ct)*4
                c = "0" if t == 1 else str(acc1[4*ct:4*ct+4])
                a(f"v_mfma_f32_16x16x32_bf16 {acc1[4*ct:4*ct+4]}, {wt[o:o+4]}, {xnb[4*(t-1):4*t]}, {c}")
    a("s_waitcnt lgkmcnt(0)")
    for ct in range(4):
        a(f"v_mfma_f32_16x16x32_bf16 {acc1[4*ct:4*ct+4]}, {wt[(12+ct)*4:(12+ct)*4+4]}, {xnb[12:16]}, {acc1[4*ct:4*ct+4]}")
    a(f"s_mov_b64 exec, {sHalf}")
    for ct in range(4):
        a(f"ds_write_b128 {vS1w}, {acc1[4*ct:4*ct+4]} offset:{64*ct}")
    a("s_mov_b64 exec, -1")
    a("s_waitcnt lgkmcnt(0)")
    a("s_barrier")
    a(f"s_cmp_ge_u32 {cw}, 2")
    a("s_cbranch_scc1 L_nopub1")
    for w_ in range(4):
        a(f"ds_read_b128 {wt[4*w_:4*w_+4]}, {vS1r} offset:{w_*S1W}")
    a("s_waitcnt lgkmcnt(0)")
    for k in range(0, 4, 2):
        a(f"v_pk_add_f32 {wt[k:k+2]}, {wt[k:k+2]}, {wt[4+k:6+k]}")
        a(f"v_pk_add_f32 {wt[8+k:10+k]}, {wt[8+k:10+k]}, {wt[12+k:14+k]}")
    for k in range(0, 4, 2):
        a(f"v_pk_add_f32 {wt[k:k+2]}, {wt[k:k+2]}, {wt[8+k:10+k]}")
    tag(a, wt[0:4])
    a(f"buffer_store_dwordx4 {wt[0:4]}, {vPub}, {sWS}, {sPub} offen {hs}")
    stamp(PC, "pub1", [4, 5])
    a.label("L_nopub1")
    V.release(mB)
    final_addrs(PC)
    vOPp = V(); vOPg = V(); vOr = V(); vFr = V()
    a(f"s_lshl_b32 {st0}, {sG}, 18")
    a(f"s_lshl_b32 {st1}, {sB}, 12")
    a(f"s_add_u32 {st0}, {st0}, {st1}")
    a(f"s_lshl_b32 {st1}, {sSp}, 9")
    a(f"s_add_u32 {st0}, {st0}, {st1}")
    a(f"s_add_u32 {st0}, {st0}, {OP}")
    a(f"v_lshlrev_b32 {t0}, 15, {th}")
    a(f"v_lshl_add_u32 {t0}, {tl}, 4, {t0}")
    a(f"v_add_u32 {vOPp}, {st0}, {t0}")
    a(f"s_lshl_b32 {st0}, {sHf}, 15")
    a(f"s_add_u32 {st0}, {st0}, {OP}")
    a(f"v_lshl_add_u32 {t0}, {th}, 12, {st0}")
    a(f"v_lshl_add_u32 {vOPg}, {tl}, 4, {t0}")
    a(f"v_mul_u32_u24 {t0}, 144, {tl}")
    a(f"v_lshl_add_u32 {t0}, {th}, 4, {t0}")
    a(f"v_add_u32 {vOr}, {L_OS}, {t0}")
    a(f"v_lshlrev_b32 {t0}, 4, {th}")
    a(f"v_add_u32 {vFr}, {L_F}, {t0}")
    mC = V.mark()
    vKr = V(4); vPw = V(); vMLw = V()
    a(f"v_and_b32 {t0}, 15, {lane}")
    a(f"v_and_b32 {t1}, 3, {lane}")
    a(f"v_lshlrev_b32 {t1}, 10, {t1}")
    a(f"v_bfe_u32 {t2}, {lane}, 2, 2")
    a(f"v_lshl_add_u32 {t1}, {t2}, 8, {t1}")
    a(f"v_add_u32 {t1}, {sLdsC}, {t1}")
    a(f"v_xor_b32 {t0}, {t0}, {lj}")
    for t in range(4):
        a(f"v_xor_b32 {t2}, {4*t}, {t0}")
        a(f"v_lshl_add_u32 {vKr[t]}, {t2}, 4, {t1}")
    a(f"v_lshlrev_b32 {t0}, 7, {lj}")
    a(f"v_lshl_add_u32 {t0}, {lb}, 4, {t0}")
    a(f"v_bfe_u32 {t1}, {lane}, 3, 1")
    a(f"v_lshl_add_u32 {t0}, {t1}, 10, {t0}")
    a(f"s_lshl_b32 {st0}, {cw}, 11")
    a(f"s_add_u32 {st0}, {st0}, {L_P}")
    a(f"v_add_u32 {vPw}, {st0}, {t0}")
    a(f"s_lshl_b32 {st0}, {cw}, 3")
    a(f"s_add_u32 {st0}, {st0}, {L_ML}")
    a(f"v_lshl_add_u32 {vMLw}, {lb}, 5, {st0}")
    qa = V(16); qb = V(16)
    for i in range(16):
        a(f"v_mov_b32 {qa[i]}, 0")
        a(f"v_mov_b32 {qb[i]}, 0")
    a("s_barrier")
    stamp(PC, "B3", CW)
    kt = V(64); sc = V(16)
    graw, gg = kt[0:16], kt[16:32]
    gl = [f"buffer_load_dwordx4 {graw[0:4]}, {vGq}, {sWS}, {sGq[0]} offen sc1",
          f"buffer_load_dwordx4 {graw[4:8]}, {vGq}, {sWS}, {sGq[1]} offen sc1",
          f"buffer_load_dwordx4 {graw[8:12]}, {vGh}, {sWS}, {sGh[0]} offen sc1",
          f"buffer_load_dwordx4 {graw[12:16]}, {vGh}, {sWS}, {sGh[1]} offen sc1"]
    for x in gl:
        a(x)
    poll(a, "g", gl, gg, graw, GSLEEP)
    stamp(PC, "gok", CW); count(PC, "g", CW)
    for o in (0, 8):
        a(f"v_pk_add_f32 {gg[o:o+2]}, {gg[o:o+2]}, {gg[o+4:o+6]}")
        a(f"v_pk_add_f32 {gg[o+2:o+4]}, {gg[o+2:o+4]}, {gg[o+6:o+8]}")
        a(f"v_cvt_pk_bf16_f32 {gg[o+4]}, {gg[o]}, {gg[o+1]}")
        a(f"v_cvt_pk_bf16_f32 {gg[o+5]}, {gg[o+2]}, {gg[o+3]}")
    a(f"ds_write_b64 {vGl}, {gg[4:6]}")
    g0 = gg[8:12]
    for k in range(2):
        unpack(a, g0[0], g0[1], gg[12+k])
        unpack(a, g0[2], g0[3], b1o[k])
        a(f"v_add_f32 {g0[0]}, {g0[0]}, {g0[2]}")
        a(f"v_add_f32 {g0[1]}, {g0[1]}, {g0[3]}")
        a(f"v_cvt_pk_bf16_f32 {t0}, {g0[0]}, {g0[1]}")
        unpack(a, g0[0], g0[1], t0)
        a(f"v_max_f32 {g0[0]}, 0, {g0[0]}")
        a(f"v_max_f32 {g0[1]}, 0, {g0[1]}")
        a(f"v_mul_f32 {g0[0]}, {g0[0]}, {g0[0]}")
        a(f"v_mul_f32 {g0[1]}, {g0[1]}, {g0[1]}")
        a(f"v_cvt_pk_bf16_f32 {gg[12+k]}, {g0[0]}, {g0[1]}")
    a(f"ds_write_b64 {vGl}, {gg[12:14]} offset:{L_H - L_Q}")
    a("s_waitcnt lgkmcnt(0)")
    a("s_barrier")
    stamp(PC, "B4", CW)
    a(f"s_mov_b64 exec, {sHalf}")
    for t in range(4):
        a(f"ds_read_b128 {qa[4*t:4*t+4]}, {PC.vQr} offset:{64*t}")
    a(f"s_not_b64 exec, exec")
    for t in range(4):
        a(f"ds_read_b128 {qb[4*t:4*t+4]}, {PC.vQr} offset:{64*t}")
    a("s_mov_b64 exec, -1")
    def kreads(bt):
        for T2 in range(2):
            for t in range(4):
                o = (bt & 1)*32 + (T2*4 + t)*4
                a(f"ds_read_b128 {kt[o:o+4]}, {vKr[t]} offset:{(bt*2 + T2)*4096}")
    def kmm(bt):
        q = qa if bt < 2 else qb
        for t in range(4):
            for T2 in range(2):
                T = (bt & 1)*2 + T2
                o = (bt & 1)*32 + (T2*4 + t)*4
                c = "0" if (t == 0 and bt < 2) else str(sc[4*T:4*T+4])
                a(f"v_mfma_f32_16x16x32_bf16 {sc[4*T:4*T+4]}, {kt[o:o+4]}, {q[4*t:4*t+4]}, {c}")
    kreads(0)
    a("s_waitcnt lgkmcnt(7)")
    kreads(1)
    for bt in range(4):
        a(f"s_waitcnt lgkmcnt({8 if bt < 3 else 0})")
        kmm(bt)
        if bt + 2 < 4:
            a("s_nop 7")
            kreads(bt + 2)
    for i in range(0, 16, 2):
        a(f"v_cvt_pk_bf16_f32 {t0}, {sc[i]}, {sc[i+1]}")
        unpack(a, sc[i], sc[i+1], t0)
        a(f"v_mul_f32 {sc[i]}, {hex(SCALE)}, {sc[i]}")
        a(f"v_mul_f32 {sc[i+1]}, {hex(SCALE)}, {sc[i+1]}")
        a(f"v_cvt_pk_bf16_f32 {t0}, {sc[i]}, {sc[i+1]}")
        unpack(a, sc[i], sc[i+1], t0)
    ml = V(2)
    mw, lw = ml[0], ml[1]
    a(f"v_max3_f32 {mw}, {sc[0]}, {sc[1]}, {sc[2]}")
    for i in range(3, 15, 2):
        a(f"v_max3_f32 {mw}, {mw}, {sc[i]}, {sc[i+1]}")
    a(f"v_max_f32 {mw}, {mw}, {sc[15]}")
    ror(a, mw, 8, "max"); swap16(a, mw, t0, "max"); swap32(a, mw, t0, "max")
    sL2E = S()
    a(f"s_mov_b32 {sL2E}, {hex(LOG2E)}")
    for i in range(16):
        a(f"v_sub_f32 {sc[i]}, {sc[i]}, {mw}")
    for i in range(16):
        a(f"v_mul_f32 {sc[i]}, {sL2E}, {sc[i]}")
    for i in range(16):
        a(f"v_exp_f32 {sc[i]}, {sc[i]}")
    pp = kt[0:8]
    for i in range(8):
        a(f"v_cvt_pk_bf16_f32 {pp[i]}, {sc[2*i]}, {sc[2*i+1]}")
    a(f"ds_write_b128 {vPw}, {pp[0:4]}")
    a(f"ds_write_b128 {vPw}, {pp[4:8]} offset:512")
    for i in range(0, 8, 2):
        a(f"v_pk_add_f32 {sc[i:i+2]}, {sc[i:i+2]}, {sc[8+i:10+i]}")
    for i in range(0, 4, 2):
        a(f"v_pk_add_f32 {sc[i:i+2]}, {sc[i:i+2]}, {sc[4+i:6+i]}")
    a(f"v_pk_add_f32 {sc[0:2]}, {sc[0:2]}, {sc[2:4]}")
    a(f"v_add_f32 {lw}, {sc[0]}, {sc[1]}")
    ror(a, lw, 8, "add"); swap16(a, lw, t0, "add"); swap32(a, lw, t0, "add")
    a("s_mov_b64 exec, 0xff")
    a(f"ds_write_b64 {vMLw}, {ml}")
    a("s_mov_b64 exec, -1")
    a("s_waitcnt lgkmcnt(0)")
    stamp(PC, "QKdone", CW)
    a("s_barrier")
    a(f"s_cmp_lg_u32 {cw}, 3")
    a("s_cbranch_scc1 L_noml")
    m8 = kt[0:8]; e4 = kt[8:12]; mlg = kt[12:14]; vTml = kt[14:16]; tm = kt[16:18]; mlr = kt[18:20]; mu_ = kt[20:22]
    l8 = kt[22]
    a(f"v_lshlrev_b32 {t0}, 5, {lb}")
    a(f"v_add_u32 {t0}, {L_ML}, {t0}")
    a(f"ds_read_b128 {m8[0:4]}, {t0}")
    a(f"ds_read_b128 {m8[4:8]}, {t0} offset:16")
    a(f"v_and_b32 {t1}, 1, {lane}")
    a(f"v_cmp_eq_u32 vcc, 0, {t1}")
    for k in range(2):
        a(f"v_mov_b32 {t1}, {sT[k]}")
        a(f"v_mov_b32 {t2}, {sT[2+k]}")
        a(f"v_cndmask_b32 {vTml[k]}, {t2}, {t1}, vcc")
    sML = S()
    a(f"s_lshl_b32 {sML}, s2, 6")
    a(f"s_add_u32 {sML}, {sML}, {ML}")
    a(f"v_lshlrev_b32 {l8}, 3, {lane}")
    a("s_waitcnt lgkmcnt(0)")
    a(f"v_max3_f32 {mlg[0]}, {m8[0]}, {m8[2]}, {m8[4]}")
    a(f"v_max_f32 {mlg[0]}, {mlg[0]}, {m8[6]}")
    def exps(M):
        for k in range(4):
            a(f"v_sub_f32 {e4[k]}, {m8[2*k]}, {M}")
        for k in range(4):
            a(f"v_mul_f32 {e4[k]}, {sL2E}, {e4[k]}")
        for k in range(4):
            a(f"v_exp_f32 {e4[k]}, {e4[k]}")
    exps(mlg[0])
    a(f"v_mul_f32 {mlg[1]}, {e4[0]}, {m8[1]}")
    for k in range(1, 4):
        a(f"v_fmac_f32 {mlg[1]}, {e4[k]}, {m8[2*k+1]}")
    for k in range(2):
        a(f"v_bfi_b32 {tm[k]}, {vFF}, {vTml[k]}, {mlg[k]}")
    a("s_mov_b64 exec, 0xff")
    a(f"buffer_store_dwordx2 {tm}, {l8}, {sWS}, {sML} offen {hs}")
    a("s_mov_b64 exec, -1")
    stamp(PC, "MLpub", [7])
    a(f"s_and_b32 {sML}, {sML}, 0xfffffe00")
    a(f"s_mov_b32 {sSpin}, 0")
    a.label("L_ml_again")
    a("s_sleep 16")
    a(f"buffer_load_dwordx2 {mlr}, {l8}, {sWS}, {sML} offen sc1")
    a("s_waitcnt vmcnt(0)")
    for k in range(2):
        a(f"v_xor_b32 {mu_[k]}, {vTml[k]}, {mlr[k]}")
    a(f"v_or_b32 {t0}, {mu_[0]}, {mu_[1]}")
    a(f"v_and_b32 {t0}, {vFF}, {t0}")
    a(f"v_cmp_ne_u32 vcc, 0, {t0}")
    a("s_cbranch_vccz L_ml_ok")
    a(f"s_add_u32 {sSpin}, {sSpin}, 1")
    a(f"s_cmp_le_u32 {sSpin}, {SPIN_LIMIT}")
    a("s_cbranch_scc1 L_ml_again")
    a.label("L_ml_ok")
    a(f"v_mov_b32 {t1}, {mu_[0]}")
    ror(a, t1, 8, "max"); swap16(a, t1, t0, "max"); swap32(a, t1, t0, "max")
    a(f"v_sub_f32 {t2}, {mu_[0]}, {t1}")
    a(f"v_mul_f32 {t2}, {sL2E}, {t2}")
    a(f"v_exp_f32 {t2}, {t2}")
    exps(t1)
    a(f"v_mul_f32 {t2}, {t2}, {mu_[1]}")
    ror(a, t2, 8, "add"); swap16(a, t2, t0, "add"); swap32(a, t2, t0, "add")
    a(f"v_rcp_f32 {t2}, {t2}")
    a(f"v_lshlrev_b32 {t0}, 4, {lb}")
    a(f"v_add_u32 {t0}, {L_F}, {t0}")
    for k in range(4):
        a(f"v_mul_f32 {e4[k]}, {e4[k]}, {t2}")
    a("s_mov_b64 exec, 0xff")
    a(f"ds_write_b128 {t0}, {e4}")
    a("s_mov_b64 exec, -1")
    a("s_waitcnt lgkmcnt(0)")
    stamp(PC, "MLok", [7]); count(PC, "ml", [7])
    a.label("L_noml")
    V.release(mC)
    xs = V(8)
    unpack(a, xs[0], xs[1], xo[0]); unpack(a, xs[2], xs[3], xo[1])
    unpack(a, xs[4], xs[5], b2o[0]); unpack(a, xs[6], xs[7], b2o[1])
    for k in range(4):
        a(f"v_add_f32 {xs[k]}, {xs[k]}, {xs[4+k]}")
    sFPr = S()
    a(f"s_lshl_b32 {sFPr}, s2, 12")
    a(f"s_add_u32 {sFPr}, {sFPr}, {FP}")
    a("s_barrier")
    stamp(PC, "B6", CW)
    g = V(16); fc = V(4)
    a(f"ds_read_b128 {fc}, {vFr}")
    for w_ in range(4):
        a(f"ds_read_b128 {g[4*w_:4*w_+4]}, {vOr} offset:{4608*w_}")
    for w_ in range(4):
        a(f"s_waitcnt lgkmcnt({3 - w_})")
        for k in range(4):
            a(f"v_mul_f32 {g[k]}, {g[k]}, {fc[0]}" if w_ == 0 else f"v_fmac_f32 {g[k]}, {g[4*w_+k]}, {fc[w_]}")
    tag(a, g[0:4])
    a(f"buffer_store_dwordx4 {g[0:4]}, {vOPp}, {sWS}, 0 offen {hs}")
    stamp(PC, "Opub", CW)
    a("s_barrier")
    stamp(PC, "B6b", CW)
    oraw = V(32); ou = V(32)
    ol = [f"buffer_load_dwordx4 {oraw[4*s_:4*s_+4]}, {vOPg}, {sWS}, 0 offen offset:{512*s_} sc1" for s_ in range(8)]
    for x in ol:
        a(x)
    wf, ob, fa, fb = V(16), V(16), V(4), V(4)
    ffn_part(PC, wf, ob, fa, fb)
    poll(a, "o", ol, ou, oraw)
    stamp(PC, "Ook", CW); count(PC, "o", CW)
    for step in (16, 8, 4):
        for k in range(0, step, 2):
            a(f"v_pk_add_f32 {ou[k:k+2]}, {ou[k:k+2]}, {ou[step+k:step+k+2]}")
    a(f"v_cvt_pk_bf16_f32 {ou[0]}, {ou[0]}, {ou[1]}")
    a(f"v_cvt_pk_bf16_f32 {ou[1]}, {ou[2]}, {ou[3]}")
    a(f"ds_write_b64 {vGl}, {ou[0:2]} offset:{L_O - L_Q}")
    a("s_waitcnt lgkmcnt(0)")
    a("s_barrier")
    stamp(PC, "B7", CW)
    attn_part(PC, wf, ob, fa, fb, CW)
    a(f"s_cmp_lg_u32 {cw}, 0")
    a("s_cbranch_scc1 L_fin")
    rraw, r = oraw[0:16], ou[0:16]
    rl = [f"buffer_load_dwordx4 {rraw[4*k:4*k+4]}, {l16}, {sWS}, {sFPr} offen offset:{1024*k} sc1" for k in range(4)]
    for x in rl:
        a(x)
    poll(a, "r", rl, r, rraw)
    stamp(PC, "Rok", [4]); count(PC, "r", [4])
    for step in (8, 4):
        for k in range(0, step, 2):
            a(f"v_pk_add_f32 {r[k:k+2]}, {r[k:k+2]}, {r[step+k:step+k+2]}")
    for k in range(4):
        ror(a, r[k], 8, "add")
    for k in range(4):
        a(f"v_mov_b32 {r[4+k]}, {r[k]}")
    for k in range(4):
        a(f"v_permlane16_swap_b32 {r[k]}, {r[4+k]}")
    for k in range(4):
        a(f"v_add_f32 {r[k]}, {r[k]}, {r[4+k]}")
    for k in range(4):
        a(f"v_mov_b32 {r[4+k]}, {r[k]}")
    for k in range(4):
        a(f"v_permlane32_swap_b32 {r[k]}, {r[4+k]}")
    for k in range(4):
        a(f"v_add_f32 {r[k]}, {r[k]}, {r[4+k]}")
    for k in range(4):
        a(f"v_add_f32 {r[k]}, {r[k]}, {xs[k]}")
    a(f"v_cvt_pk_bf16_f32 {r[0]}, {r[0]}, {r[1]}")
    a(f"v_cvt_pk_bf16_f32 {r[1]}, {r[2]}, {r[3]}")
    a("s_mov_b64 exec, 0xff")
    a(f"buffer_store_dwordx2 {r[0:2]}, {vOut}, {sOUT}, 0 offen")
    a(f"s_mov_b32 {st1}, {OOB}")
    a("s_cmp_eq_u32 s2, 0")
    a(f"s_cselect_b32 {st0}, {EPO}, {st1}")
    a(f"v_mov_b32 {t0}, {sE}")
    a("s_mov_b64 exec, 1")
    a(f"buffer_store_dword {t0}, off, {sWS}, {st0}")
    a("s_mov_b64 exec, -1")
    a.label("L_fin")
    finish(PC, "C", CW)
    a.label("L_end")
    a("s_endpgm")

    if STREAM:
        PC.a.lines, stamp_names = keep
    body = pad(P0.a.lines + PL.a.lines + PC.a.lines)
    hdr = open("cdna_kernels/" + NAME + ".s.ref").read().split("; Override launch")[0]
    nv = (max(PL.V.high, PC.V.high) + 7) // 8 * 8
    out = hdr + f"; @launch grid=(256,1,1) block=(512,1,1) lds={LDS_BYTES}\n"
    out += '.amdgcn_target "amdgcn-amd-amdhsa--gfx950"\n.text\n'
    out += f".globl {KNAME}\n.p2align 8\n.type {KNAME},@function\n"
    for ln in body:
        out += (ln if ln.endswith(":") else "    " + ln) + "\n"
    out += '.section .rodata,"a"\n.p2align 6\n'
    out += f".amdhsa_kernel {KNAME}\n"
    out += f"  .amdhsa_next_free_vgpr {nv}\n  .amdhsa_next_free_sgpr 102\n  .amdhsa_accum_offset {nv}\n"
    out += "  .amdhsa_group_segment_fixed_size 0\n  .amdhsa_kernarg_size 104\n  .amdhsa_user_sgpr_count 2\n"
    out += "  .amdhsa_user_sgpr_kernarg_segment_ptr 1\n  .amdhsa_system_sgpr_workgroup_id_x 1\n"
    out += "  .amdhsa_float_denorm_mode_32 3\n"
    out += ".end_amdhsa_kernel\n"
    assert len(stamp_names) <= 32
    return out, stamp_names

if __name__ == "__main__":
    import json
    kw = eval("dict(" + (sys.argv[2] if len(sys.argv) > 2 else "") + ")")
    txt, st = gen(**kw)
    open(sys.argv[1], "w").write(txt)
    json.dump(st, open(sys.argv[1] + ".json", "w"))
```
